```python
import torch

def _softmax(x, axis=-1):
    return torch.softmax(x, dim=axis)
def _gelu(x):
    return torch.nn.functional.gelu(x, approximate="tanh")
def _silu(x):
    return torch.nn.functional.silu(x)
def _sigmoid(x):
    return torch.sigmoid(x)
def _layernorm(x, axis=-1, eps=1e-5):
    m = x.mean(dim=axis, keepdim=True)
    v = x.var(dim=axis, keepdim=True, unbiased=False)
    return (x - m) / torch.sqrt(v + eps)
def _scatter_add(tgt, idx, src, axis=0):
    return tgt.clone().index_add_(axis, idx, src)
def _segment_sum(src, seg, n):
    out = torch.zeros((n,) + src.shape[1:], dtype=src.dtype)
    return out.index_add_(0, seg, src)
def _pad(x, pw):
    flat = tuple(v for pair in reversed(pw) for v in pair)
    return torch.nn.functional.pad(x, flat)

kernel_name = 'recurrent_scan__mha_block_cached__glu_gated_bilinear__prompt'

def setup_inputs():

    _w = (lambda a: (lambda t: t.to(torch.bfloat16) if t.is_floating_point() else t)(torch.as_tensor(a)))
    def _A_setup():
        B, Sq, D = 1, 2048, 576
        H, Sk, Dh = 32, 2048, 128
        return {
            "x": _w((lambda *s: torch.randn(*s, dtype=torch.bfloat16) * 0.05)(B, Sq, D)),
            "k_cache": _w((lambda *s: torch.randn(*s, dtype=torch.bfloat16) * 1.6)(B, H, Sk, Dh)),
            "v_cache": _w((lambda *s: torch.randn(*s, dtype=torch.bfloat16) * 1.6)(B, H, Sk, Dh)),
            "wq": _w((lambda *s: torch.randn(*s, dtype=torch.bfloat16) * 1.6)(D, H * Dh) * (D ** -0.5)),
            "wo": _w((lambda *s: torch.randn(*s, dtype=torch.bfloat16) * 1.6)(H * Dh, D) * ((H * Dh) ** -0.5)),
        }
    _A_in = _A_setup()

    def _B_setup():
        B, S, D, F = 1, 2048, 576, 4608
        return {
            "x": _w((lambda *s: torch.randn(*s, dtype=torch.bfloat16) * 0.05)(B, S, D)),
            "w_gate": _w((lambda *s: torch.randn(*s, dtype=torch.bfloat16) * 0.2)(D, F) * (D ** -0.5)),
            "w_up": _w((lambda *s: torch.randn(*s, dtype=torch.bfloat16) * 0.2)(D, F) * (D ** -0.5)),
            "w_down": _w((lambda *s: torch.randn(*s, dtype=torch.bfloat16) * 0.2)(F, D) * (F ** -0.5)),
        }
    _B_in = _B_setup()

    return {
        "A_x": _A_in["x"],
        "A_k_cache": _A_in["k_cache"],
        "A_v_cache": _A_in["v_cache"],
        "A_wq": _A_in["wq"],
        "A_wo": _A_in["wo"],
        "B_x": _B_in["x"],
        "B_w_gate": _B_in["w_gate"],
        "B_w_up": _B_in["w_up"],
        "B_w_down": _B_in["w_down"],
    }

def reference(A_x, A_k_cache, A_v_cache, A_wq, A_wo, B_x, B_w_gate, B_w_up, B_w_down):
    def _A_ref(x, k_cache, v_cache, wq, wo):
        B, Sq, D = x.shape
        H, Dh = 32, 128
        q = (lambda x, *d: x.permute(*d))((x @ wq).reshape(B, Sq, H, Dh), 0, 2, 1, 3)
        scores = torch.einsum("bhqd,bhkd->bhqk", q, k_cache) * (Dh ** -0.5)
        p = _softmax(scores, axis=-1)
        o = torch.einsum("bhqk,bhkd->bhqd", p, v_cache)
        return (lambda x, *d: x.permute(*d))(o, 0, 2, 1, 3).reshape(B, Sq, H * Dh) @ wo

    def _B_ref(x, w_gate, w_up, w_down):
        g = torch.einsum("bsd,df->bsf", x, w_gate)
        u = torch.einsum("bsd,df->bsf", x, w_up)
        h = g * u
        return torch.einsum("bsf,fd->bsd", h, w_down)

    x = A_x
    xn = _layernorm(x, axis=-1)
    s = _A_ref(xn, A_k_cache, A_v_cache, A_wq, A_wo)
    g = _silu(_B_ref(xn, B_w_gate, B_w_up, B_w_down))
    return x + s * g
```

```python
class Counter:
    def __init__(self, name, maxv):
        self.name, self.maxv = name, maxv
        self.q = []
    def issue(self, tag):
        self.q.append(tag)
    def need(self, *tags):
        last = -1
        for i, t in enumerate(self.q):
            if t in tags:
                last = i
        if last < 0:
            return None
        n = len(self.q) - 1 - last
        return n
    def done_upto(self, n):
        if n == 0: self.q = []
        elif n < len(self.q): self.q = self.q[-n:]
    def wait(self, *tags):
        n = self.need(*tags)
        if n is None:
            return None
        n = min(n, self.maxv)
        self.done_upto(n)
        return f"s_waitcnt {self.name}({n})"

def vr(b, n=1):
    return f"v{b}" if n == 1 else f"v[{b}:{b+n-1}]"
def ar(b, n=1):
    return f"a{b}" if n == 1 else f"a[{b}:{b+n-1}]"
def sr(b, n=1):
    return f"s{b}" if n == 1 else f"s[{b}:{b+n-1}]"

class Asm:
    def __init__(self):
        self.lines = []
    def __call__(self, s):
        if s is None: return
        if isinstance(s, (list, tuple)):
            for x in s: self(x)
            return
        self.lines.append("    " + s)
    def label(self, l):
        self.lines.append(l + ":")
    def raw(self, s):
        self.lines.append(s)
    def c(self, s):
        self.lines.append("    ; " + s)
    def text(self):
        return "\n".join(self.lines) + "\n"

def kdesc(name, vgpr, sgpr, accum, wgy=False):
    return f""".section .rodata,"a"
.p2align 6
.amdhsa_kernel {name}
  .amdhsa_next_free_vgpr {vgpr}
  .amdhsa_next_free_sgpr {sgpr}
  .amdhsa_accum_offset {accum}
  .amdhsa_group_segment_fixed_size 0
  .amdhsa_kernarg_size 96
  .amdhsa_user_sgpr_count 2
  .amdhsa_user_sgpr_kernarg_segment_ptr 1
  .amdhsa_system_sgpr_workgroup_id_x 1
  .amdhsa_float_denorm_mode_32 3
.end_amdhsa_kernel
.text
"""
def kstart(name):
    return f""".text
.globl {name}
.p2align 8
.type {name},@function
{name}:
"""
import struct
def f32(x):
    return "0x%08x" % struct.unpack("<I", struct.pack("<f", x))[0]
```

```python
from asmlib import *
WS_XN = 0
def gen_k0(name):
    a = Asm()
    a.raw(kstart(name))
    a("s_cmp_ge_u32 s2, 256")
    a("s_cbranch_scc1 L_k0_done")
    a("s_load_dwordx2 s[4:5], s[0:1], 0")
    a("s_load_dwordx2 s[8:9], s[0:1], 88")
    a("v_lshrrev_b32 v1, 3, v0")
    a("v_and_b32 v2, 7, v0")
    a("s_lshl_b32 s3, s2, 3")
    a("v_add_u32 v1, s3, v1")
    a("v_mul_u32_u24 v3, 1152, v1")
    a("v_lshl_add_u32 v3, v2, 4, v3")
    a("v_lshrrev_b32 v4, 5, v1")
    a("v_mul_u32_u24 v4, 36864, v4")
    a("v_and_b32 v5, 31, v1")
    a("v_lshl_add_u32 v4, v5, 4, v4")
    a("v_lshl_add_u32 v4, v2, 9, v4")
    a("s_waitcnt lgkmcnt(0)")
    a("s_mov_b32 s6, 2359296")
    a("s_mov_b32 s7, 0x20000")
    a("s_and_b32 s5, s5, 0xffff")
    a("s_mov_b32 s10, 2359296")
    a("s_mov_b32 s11, 0x20000")
    a("s_and_b32 s9, s9, 0xffff")
    D = 8
    for i in range(9):
        a(f"buffer_load_dwordx4 {vr(D+4*i,4)}, v3, s[4:7], 0 offen offset:{128*i}")
    F = 44
    a("s_mov_b32 s12, 0xffff0000")
    for i in range(9):
        a(f"s_waitcnt vmcnt({8-i})")
        for r in range(4):
            src = D + 4*i + r
            a(f"v_lshlrev_b32 v{F+8*i+2*r}, 16, v{src}")
            a(f"v_and_b32 v{F+8*i+2*r+1}, s12, v{src}")
        for r in range(4):
            if i == 0 and r == 0:
                a(f"v_mov_b32 v6, v{F}")
                a(f"v_mov_b32 v7, v{F+1}")
            else:
                a(f"v_add_f32 v6, v6, v{F+8*i+2*r}")
                a(f"v_add_f32 v7, v7, v{F+8*i+2*r+1}")
    def red8(v):
        a("s_nop 1")
        a(f"v_add_f32_dpp {v}, {v}, {v} quad_perm:[1,0,3,2] row_mask:0xf bank_mask:0xf")
        a("s_nop 1")
        a(f"v_add_f32_dpp {v}, {v}, {v} quad_perm:[2,3,0,1] row_mask:0xf bank_mask:0xf")
        a("s_nop 1")
        a(f"v_add_f32_dpp {v}, {v}, {v} row_half_mirror row_mask:0xf bank_mask:0xf")
    a("v_add_f32 v6, v6, v7")
    red8("v6")
    a(f"v_mul_f32 v6, {f32(1.0/576)}, v6")
    a("v_mov_b32 v7, 0")
    a("v_mov_b32 v5, 0")
    for e in range(72):
        t = 116 + (e % 4)
        acc = "v7" if e % 2 == 0 else "v5"
        a(f"v_sub_f32 v{t}, v{F+e}, v6")
        a(f"v_fmac_f32 {acc}, v{t}, v{t}")
    a("v_add_f32 v7, v7, v5")
    red8("v7")
    a(f"v_mul_f32 v7, {f32(1.0/576)}, v7")
    def rb(v):
        a(f"v_cvt_pk_bf16_f32 {v}, {v}, {v}")
        a(f"v_lshlrev_b32 {v}, 16, {v}")
    rb("v6"); rb("v7")
    a(f"v_add_f32 v7, {f32(1e-5)}, v7")
    rb("v7")
    a("v_sqrt_f32 v7, v7")
    a("s_nop 0")
    rb("v7")
    a("v_rcp_f32 v7, v7")
    a("s_nop 0")
    a("v_mul_f32 v6, v6, v7")
    for i in range(9):
        for r in range(4):
            e = F + 8*i + 2*r
            a(f"v_fma_f32 v{e}, v{e}, v7, -v6")
            a(f"v_fma_f32 v{e+1}, v{e+1}, v7, -v6")
            a(f"v_cvt_pk_bf16_f32 v{D+4*i+r}, v{e}, v{e+1}")
        a(f"s_mov_b32 s13, {4096*i}")
        a(f"buffer_store_dwordx4 {vr(D+4*i,4)}, v4, s[8:11], s13 offen")
    a.label("L_k0_done")
    a("s_endpgm")
    a.raw(kdesc(name, 120, 24, 120))
    return a.text()
```

```python
from asmlib import *
import math
WS_XN = 0
WS_H = 0x400000
WS_O = 0x1800000
SWAPODD = 1

KBASE = 0
VBASE = 65536
WPITCH = 1088
WSLOT = 16 * WPITCH
NW = 6
WBASE = 163840 - NW * WSLOT
LDS_BYTES = 163840

S_K, S_V, S_XN, S_H, S_O = 4, 8, 12, 16, 20
S_W, S_J, S_QB, S_CNT, S_KOFF, S_M0KV, S_THR, S_FLOOR = 24, 25, 26, 27, 28, 29, 30, 31
S_RET = 32
S_C, S_BOFF, S_M0W, S_VOFF, S_T0, S_T1 = 34, 35, 36, 37, 38, 39
S_P0 = 40

V_LANE = 0
V_WA = 2
V_WS = 4
V_BA, V_BB = 6, 7
V_GU0, V_GU1, V_WQ0, V_WQ1 = 8, 9, 10, 11
V_DK, V_DV = 12, 13
V_ST = 14
V_T = 15
V_B = 16
V_A = 48
V_KA = 80
V_VA = 88
V_ACC8 = 96
V_ACCQ = 128
V_Q = 16
V_TMP = 96
V_S = 128
V_NEGM = 192
V_P = 224
V_L = 124
V_TS = 126
V_E = 96
A_O, A_K, A_V = 0, 128, 160

def par(p): return bin(p).count("1") & 1

def fold(insts):
    import re
    base = insts[0]
    out = []
    for i, l in enumerate(base):
        col = [x[i] for x in insts]
        assert all(len(x) == len(base) for x in insts), [len(x) for x in insts]
        if all(c == l for c in col):
            out.append(l); continue
        ms = [re.fullmatch(r"s_waitcnt (\w+)\((\d+)\)", c) for c in col]
        assert all(ms) and len({m.group(1) for m in ms}) == 1, col
        out.append(f"s_waitcnt {ms[0].group(1)}({min(int(m.group(2)) for m in ms)})")
    return out

def always_wait(cnt, *tags):
    w = cnt.wait(*tags)
    return w if w else f"s_waitcnt {cnt.name}({cnt.maxv})"

def acc_reg(T, qb):
    if T < 8: return ar((2*T+qb)*16, 16)
    if T == 8: return vr(V_ACC8 + 16*qb, 16)
    return vr(V_ACCQ + ((T-9)*2+qb)*16, 16)

def gen_k1(name, opt=None):
    opt = opt or {}
    a = Asm()
    vm = Counter("vmcnt", 63)
    lg = Counter("lgkmcnt", 15)
    a.raw(kstart(name))
    a("s_cmp_ge_u32 s2, 256")
    a("s_cbranch_scc1 L_k1_done")
    a("s_load_dwordx4 s[40:43], s[0:1], 8")
    a("s_load_dwordx2 s[44:45], s[0:1], 24")
    a("s_load_dwordx4 s[48:51], s[0:1], 48")
    a("s_load_dwordx2 s[46:47], s[0:1], 88")
    a("v_lshrrev_b32 v1, 6, v0")
    a("v_and_b32 v0, 63, v0")
    a(f"v_readfirstlane_b32 s{S_W}, v1")
    a(f"s_and_b32 s{S_T0}, s2, 7")
    a(f"s_lshl_b32 s{S_T0}, s{S_T0}, 2")
    a(f"s_lshr_b32 s{S_T1}, s2, 3")
    a(f"s_and_b32 s{S_T1}, s{S_T1}, 3")
    a(f"s_add_u32 s{S_J}, s{S_T0}, s{S_T1}")
    a(f"s_lshr_b32 s{S_QB}, s2, 5")
    a("v_lshrrev_b32 v96, 5, v0")
    a("v_and_b32 v97, 31, v0")
    a("v_bfe_u32 v98, v0, 4, 1")
    a("v_bfe_u32 v99, v0, 2, 2")
    a("v_and_b32 v100, 3, v0")
    a("v_lshrrev_b32 v101, 4, v0")
    a("v_and_b32 v102, 15, v0")
    a("v_and_b32 v103, 1, v100")
    a("v_lshrrev_b32 v104, 1, v100")
    a("v_xor_b32 v105, v103, v104")
    a("v_lshl_add_u32 v106, v96, 3, v99")
    a(f"v_mul_u32_u24 v106, {WPITCH}, v106")
    a(f"v_add_u32 v106, {WBASE}, v106")
    a("v_lshl_add_u32 v106, v103, 4, v106")
    half_h = "v105" if SWAPODD else "v104"
    a(f"v_lshl_add_u32 v107, {half_h}, 3, v106")
    a("v_mul_u32_u24 v108, 288, v98")
    a(f"v_add_u32 v{V_GU0}, v107, v108")
    a(f"v_add_u32 v{V_GU1}, {3*WSLOT}, v{V_GU0}")
    a("v_lshl_add_u32 v107, v104, 3, v106")
    a("v_lshl_add_u32 v107, v98, 5, v107")
    a(f"v_add_u32 v{V_WQ0}, 576, v107")
    a(f"v_add_u32 v{V_WQ1}, {3*WSLOT}, v{V_WQ0}")
    a(f"s_lshl_b32 s{S_T0}, s{S_QB}, 3")
    a(f"s_lshl_b32 s{S_T1}, s{S_W}, 1")
    a(f"s_add_u32 s{S_T0}, s{S_T0}, s{S_T1}")
    a(f"s_mul_i32 s{S_T1}, s{S_T0}, 36864")
    a(f"v_lshl_add_u32 v{V_BA}, v0, 4, s{S_T1}")
    a(f"v_add_u32 v{V_BB}, 36864, v{V_BA}")
    a(f"s_mul_i32 s{S_T1}, s{S_J}, 288")
    a(f"s_lshl_b32 s{S_CNT}, s{S_J}, 8")
    a("v_subrev_u32 v106, 52, v0")
    a("v_subrev_u32 v107, 36, v0")
    a("v_cmp_gt_u32 vcc, 52, v0")
    a("s_nop 1")
    a("v_cndmask_b32 v106, v106, v107, vcc")
    a(f"v_lshl_add_u32 v106, v106, 4, s{S_CNT}")
    a("v_subrev_u32 v107, 18, v0")
    a("v_cmp_gt_u32 vcc, 18, v0")
    a("s_nop 1")
    a("v_cndmask_b32 v107, v107, v0, vcc")
    a(f"v_lshl_add_u32 v107, v107, 4, s{S_T1}")
    a("s_waitcnt lgkmcnt(0)")
    a("v_mov_b32 v108, s50")
    a("v_mov_b32 v109, s51")
    a("v_mov_b32 v110, s48")
    a("v_mov_b32 v111, s49")
    a("v_cndmask_b32 v108, v108, v110, vcc")
    a("v_cndmask_b32 v109, v109, v111, vcc")
    a("v_mov_b32 v110, s44")
    a("v_mov_b32 v111, s45")
    a("v_cmp_gt_u32 vcc, 36, v0")
    a("v_mov_b32 v112, 8192")
    a("v_mov_b32 v113, 9216")
    a("v_cndmask_b32 v108, v110, v108, vcc")
    a("v_cndmask_b32 v109, v111, v109, vcc")
    a("v_cndmask_b32 v106, v106, v107, vcc")
    a("v_cndmask_b32 v112, v112, v113, vcc")
    a(f"v_mul_lo_u32 v113, v112, s{S_W}")
    a("v_add_u32 v106, v106, v113")
    a("v_mov_b32 v107, 0")
    a(f"v_lshl_add_u64 {vr(V_WA,2)}, v[106:107], 0, v[108:109]")
    a(f"v_lshlrev_b32 v{V_WS}, 2, v112")
    a(f"v_mov_b32 v{V_WS+1}, 0")
    a(f"s_mul_i32 s{S_M0W}, s{S_W}, {WPITCH}")
    a(f"s_add_u32 s{S_M0W}, s{S_M0W}, {WBASE}")
    def srd(d, lo, hi, off_s, off_imm, nrec):
        if off_s is not None:
            a(f"s_add_u32 s{d}, s{lo}, s{off_s}")
        else:
            a(f"s_add_u32 s{d}, s{lo}, {off_imm}")
        a(f"s_addc_u32 s{d+1}, s{hi}, 0")
        a(f"s_and_b32 s{d+1}, s{d+1}, 0xffff")
        a(f"s_mov_b32 s{d+2}, {nrec}")
        a(f"s_mov_b32 s{d+3}, 0x20000")
    srd(S_XN, 46, 47, None, WS_XN, 2359296)
    a(f"s_mov_b32 s{S_BOFF}, 0")

    def dmaW(ks, i):
        slot = ks % NW
        vm.issue(("W", ks))
        return [f"s_add_u32 m0, s{S_M0W}, {slot*WSLOT + i*4*WPITCH}",
                "s_nop 0",
                f"global_load_lds_dwordx4 {vr(V_WA,2)}, off",
                f"v_lshl_add_u64 {vr(V_WA,2)}, {vr(V_WS,2)}, 0, {vr(V_WA,2)}"]
    def loadB(ks, qb):
        vm.issue(("B", ks))
        r = V_B + (ks % 3) * 8 + 4 * qb
        l = [f"buffer_load_dwordx4 {vr(r,4)}, v{V_BA+qb}, {sr(S_XN,4)}, s{S_BOFF} offen"]
        if qb == 1: l.append(f"s_add_u32 s{S_BOFF}, s{S_BOFF}, 1024")
        return l
    for ks in range(5):
        for i in range(4): a(dmaW(ks, i))
        if ks < 2:
            a(loadB(ks, 0)); a(loadB(ks, 1))
    a(f"s_lshl_b32 s{S_T1}, s{S_J}, 19")
    srd(S_K, 40, 41, S_T1, None, 524288)
    srd(S_V, 42, 43, S_T1, None, 524288)
    srd(S_H, 46, 47, None, WS_H, 18874368)
    srd(S_O, 46, 47, None, WS_O, 16777216)
    a(f"s_lshl_b32 s{S_M0KV}, s{S_W}, 12")
    a(f"s_mov_b32 s{S_THR}, {f32(2.0**30)}")
    a(f"s_mov_b32 s{S_C}, {f32(math.log2(math.e)/math.sqrt(128.0))}")
    a(f"s_lshl_b32 s{S_T1}, s{S_W}, 4")
    a(f"v_add_u32 v106, s{S_T1}, v101")
    a("v_lshlrev_b32 v106, 8, v106")
    a("v_lshlrev_b32 v107, 2, v101")
    a("v_xor_b32 v108, v102, v107")
    a(f"v_lshl_add_u32 v{V_DV}, v108, 4, v106")
    a(f"v_xor_b32 v108, s{S_W}, v108")
    a(f"v_lshl_add_u32 v{V_DK}, v108, 4, v106")
    a("v_lshrrev_b32 v106, 3, v97")
    a("v_bfe_u32 v107, v97, 2, 1")
    a("v_lshrrev_b32 v108, 1, v106")
    a("v_xor_b32 v108, v108, v106")
    a("v_and_b32 v108, 1, v108")
    a("v_xor_b32 v107, v107, v108")
    a("v_lshlrev_b32 v109, 4, v106")
    a("v_lshl_add_u32 v109, v107, 2, v109")
    a("v_add_u32 v109, v109, v100")
    a("v_lshlrev_b32 v109, 8, v109")
    a("v_lshl_add_u32 v110, v100, 2, v106")
    a("v_xor_b32 v110, v110, v96")
    for ks in range(8):
        a(f"v_xor_b32 v111, {2*ks}, v110")
        a(f"v_lshl_add_u32 v{V_KA+ks}, v111, 4, v109")
    if KBASE: raise NotImplementedError
    half_o = "v105" if SWAPODD else "v104"
    a("v_lshl_add_u32 v106, v98, 1, v103")
    a("v_lshlrev_b32 v106, 4, v106")
    a(f"v_lshl_add_u32 v106, {half_o}, 3, v106")
    a(f"v_add_u32 v106, {VBASE}, v106")
    for pr in range(2):
        a(f"v_xor_b32 v107, {pr}, v96")
        a("v_lshl_add_u32 v107, v107, 2, v99")
        a("v_lshl_add_u32 v107, v107, 8, v106")
        for dt in range(4):
            a(f"v_xor_b32 v108, {dt}, v99")
            a(f"v_lshl_add_u32 v{V_VA+4*pr+dt}, v108, 6, v107")
    a("v_lshlrev_b32 v106, 4, v102")
    a(f"v_lshl_add_u32 v{V_ST}, v96, 8, v106")
    a(f"v_mov_b32 v{V_T}, v98")

    def dmaKV(kind, tile, i):
        slot = tile % 4
        vm.issue((kind, tile))
        base = (KBASE if kind == "K" else VBASE) + slot * 16384
        l = []
        if i == 0:
            l.append(f"s_add_u32 m0, s{S_M0KV}, {base}")
            l.append("s_nop 0")
        vo, srd_, so = (V_DK, S_K, S_KOFF) if kind == "K" else (V_DV, S_V, S_VOFF)
        l.append(f"buffer_load_dwordx4 v{vo}, {sr(srd_,4)}, s{so} offen offset:{1024*i} lds")
        if i == 3:
            l.append(f"s_add_u32 s{so}, s{so}, 16384")
        return l
    a(f"s_mov_b32 s{S_KOFF}, 0")
    a(f"s_mov_b32 s{S_VOFF}, 0")

    AHEAD = 4
    def readA(x, i4):
        ks, T = divmod(x, 13)
        slot = ks % NW
        hi = slot >= 3
        so = (slot % 3) * WSLOT + i4 * 4 * WPITCH
        if T < 9:
            ad, off = (V_GU1 if hi else V_GU0), so + T * 32
        else:
            ad, off = (V_WQ1 if hi else V_WQ0), so + (T - 9) * 64
        lg.issue(("A", x))
        return f"ds_read_b64_tr_b16 {vr(V_A + (x % 6)*4 + 2*i4, 2)}, v{ad} offset:{off}"
    a(vm.wait(("W", 0)))
    a("s_barrier")
    for x in range(AHEAD):
        a(readA(x, 0)); a(readA(x, 1))
    def kstep(ks):
        o = []
        o.append(always_wait(vm, ("B", ks)))
        extra = {}
        def put(g, l): extra.setdefault(g, []).extend(l if isinstance(l, list) else [l])
        for T in range(13):
            x = 13 * ks + T
            for qb in range(2):
                g = 2 * T + qb
                if qb == 0:
                    o.append(always_wait(lg, ("A", x)))
                c = acc_reg(T, qb) if ks > 0 else "0"
                o.append(f"v_mfma_f32_32x32x16_bf16 {acc_reg(T,qb)}, {vr(V_A+(x%6)*4,4)}, {vr(V_B+(ks%3)*8+4*qb,4)}, {c}")
                if g == 2 * (13 - AHEAD) - 1 and ks + 1 < 36:
                    o.append(always_wait(vm, ("W", ks + 1)))
                    o.append("s_barrier")
                if x + AHEAD < 13 * 36 and not (g == 2 * (13 - AHEAD) - 1 and False):
                    o.append(readA(x + AHEAD, qb))
                if g in (0, 1) and ks + 2 < 36:
                    o.extend(loadB(ks + 2, g))
                if g >= 18 and g % 2 == 0 and ks + 5 < 36:
                    o.extend(dmaW(ks + 5, (g - 18) // 2))
                if ks >= 31 and ks < 34 and g >= 18 and g % 2 == 0:
                    o.extend(dmaKV("K", ks - 31, (g - 18) // 2))
        return o
    steps = [kstep(ks) for ks in range(36)]
    for ks in range(6): a(steps[ks])
    a(f"s_mov_b32 s{S_CNT}, 4")
    a.label("L_proj")
    body = fold([sum(steps[6*p:6*p+6], []) for p in range(1, 5)])
    a(body)
    a(f"s_sub_u32 s{S_CNT}, s{S_CNT}, 1")
    a(f"s_cmp_lg_u32 s{S_CNT}, 0")
    a("s_cbranch_scc1 L_proj")
    for ks in range(30, 36): a(steps[ks])
    a("s_barrier")
    for i in range(4): a(dmaKV("V", 0, i))
    for i in range(4): a(dmaKV("K", 3, i))
    for i in range(4): a(dmaKV("V", 1, i))
    a("s_nop 7")
    for ks in range(8):
        for qb in range(2):
            src = V_ACCQ + ((ks // 2) * 2 + qb) * 16 + 8 * (ks % 2)
            for i in range(8):
                a(f"v_mul_f32 v{src+i}, s{S_C}, v{src+i}")
            for i in range(4):
                a(f"v_cvt_pk_bf16_f32 v{V_Q + (qb*8+ks)*4 + i}, v{src+2*i}, v{src+2*i+1}")
    a(f"s_lshl_b32 s{S_T0}, s{S_QB}, 4")
    a(f"s_lshl_b32 s{S_T1}, s{S_W}, 2")
    a(f"s_add_u32 s{S_T0}, s{S_T0}, s{S_T1}")
    a(f"v_add_u32 v{V_T}, s{S_T0}, v{V_T}")
    a(f"s_mov_b32 s{S_T1}, 147456")
    a(f"v_mul_lo_u32 v128, v{V_T}, s{S_T1}")
    a(f"v_add_u32 v128, v128, v{V_ST}")
    a(f"v_add_u32 v129, {2*147456}, v128")
    a(f"s_mul_i32 s{S_T1}, s{S_J}, {18*256}")
    TB = 132
    order = [4, 5, 6, 7, 0, 1, 2, 3, 8]
    n = 0
    for T in order:
        for qb in range(2):
            tb = TB + (n % 2) * 24; n += 1
            if T < 8:
                base = (2*T+qb)*16
                for i in range(16):
                    a(f"v_accvgpr_read_b32 v{tb+i}, a{base+i}")
                src = tb
            else:
                src = V_ACC8 + 16*qb
            for i in range(8):
                a(f"v_mul_f32 v{tb+i}, v{src+i}, v{src+8+i}")
            for i in range(4):
                a(f"v_cvt_pk_bf16_f32 v{tb+16+i}, v{tb+2*i}, v{tb+2*i+1}")
            vm.issue(("HS",))
            if T * 512 < 4096:
                a(f"buffer_store_dwordx4 {vr(tb+16,4)}, v{128+qb}, {sr(S_H,4)}, s{S_T1} offen offset:{T*512}")
            else:
                a(f"s_add_u32 s{S_T0}, s{S_T1}, {T*512}")
                a(f"buffer_store_dwordx4 {vr(tb+16,4)}, v{128+qb}, {sr(S_H,4)}, s{S_T0} offen")
    def readK(u, ks):
        tile, kb = divmod(u, 2)
        lg.issue(("K", u, ks))
        return f"ds_read_b128 {ar(A_K+4*ks,4)}, v{V_KA+ks} offset:{(tile%4)*16384 + kb*2048}"
    def readV(u, f, i4):
        tile, kb = divmod(u, 2)
        j, dt = divmod(f, 4)
        p = 2*j + i4
        lg.issue(("V", u, f))
        return f"ds_read_b64_tr_b16 {ar(A_V+4*f+2*i4,2)}, v{V_VA+4*par(p)+dt} offset:{(tile%4)*16384 + p*4096 + kb*2048}"
    def Sreg(u, qb): return V_S + (u % 2) * 32 + qb * 16
    def Preg(u, qb): return V_P + (u % 2) * 16 + qb * 8
    def qk(u, ks, qb, czero=False):
        c = vr(Sreg(u,qb),16) if ks > 0 else ("0" if czero else vr(V_NEGM+16*qb,16))
        return f"v_mfma_f32_32x32x16_bf16 {vr(Sreg(u,qb),16)}, {ar(A_K+4*ks,4)}, {vr(V_Q+(qb*8+ks)*4,4)}, {c}"
    def pv(u, f, qb):
        j, dt = divmod(f, 4)
        o_ = ar(A_O + (qb*4+dt)*16, 16)
        return f"v_mfma_f32_32x32x16_bf16 {o_}, {ar(A_V+4*f,4)}, {vr(Preg(u,qb)+4*j,4)}, {o_}"

    a(vm.wait(("K", 0)))
    a("s_barrier")
    for ks in range(8): a(readK(0, ks))
    zl = [f"v_accvgpr_write_b32 a{A_O+i}, 0" for i in range(128)] + [f"v_mov_b32 v{V_NEGM+i}, 0" for i in range(32)] + \
         [f"v_mov_b32 v{V_L}, 0", f"v_mov_b32 v{V_L+1}, 0"]
    a(zl[:34]); zl = zl[34:]
    for u in range(2):
        for ks in range(8):
            for qb in range(2):
                if qb == 0: a(lg.wait(("K", u, ks)))
                a(qk(u, ks, qb, czero=True))
                if qb == 1 and u == 0: a(readK(1, ks))
                a(zl[:4]); zl = zl[4:]
    assert not zl
    a(vm.wait(("K", 1), ("V", 0)))
    a("s_barrier")
    for ks in range(8): a(readK(2, ks))
    for i in range(4): a(dmaKV("K", 4, i))
    a(f"s_mov_b32 s{S_FLOOR}, 0xff800000")
    a(f"s_call_b64 {sr(S_RET,2)}, L_rare0")
    a(f"s_mov_b32 s{S_FLOOR}, 0")

    stubs = []
    def unit(u, do_qk=True, do_sm=True, tagpos=None):
        gaps = [[] for _ in range(32)]
        pre = [[] for _ in range(33)]
        mf = []
        o = []
        sm = {}
        if do_sm:
            elems = []
            for half in range(2):
                for qb in range(2):
                    for i in range(8): elems.append((qb, 8*half+i))
            egap = list(range(30))
            dbl = [17, 21]
            sched = []
            for g in range(30):
                sched.append(g)
                if g in dbl: sched.append(g)
            assert len(sched) == 32
            first = {0: True, 1: True}
            gaps[0].append(f"v_add_f32 v{V_L}, v{V_L}, v{V_TS}")
            gaps[1].append(f"v_add_f32 v{V_L+1}, v{V_L+1}, v{V_TS+1}")
            post = [[] for _ in range(33)]
            for k, (qb, i) in enumerate(elems):
                g = sched[k]
                e = V_E + (k % 8)
                gaps[g].append(f"v_exp_f32 v{e}, v{Sreg(u,qb)+i}")
                if i == 0:
                    pass
                elif i == 1:
                    post[g+1].append(f"v_add_f32 v{V_TS+qb}, v{V_E+((k-1)%8)}, v{e}")
                else:
                    post[g+1].append(f"v_add_f32 v{V_TS+qb}, v{V_TS+qb}, v{e}")
                if i % 2 == 1:
                    post[g+1].append(f"v_cvt_pk_bf16_f32 v{Preg(u,qb)+i//2}, v{V_E+((k-1)%8)}, v{e}")
            for g in range(32):
                gaps[g] = post[g] + gaps[g]
            gaps[30].append(f"v_add_f32 v{V_TMP+16}, v{V_TS}, v{V_TS+1}")
            gaps[31].append(f"v_cmp_nge_f32 vcc, s{S_THR}, v{V_TMP+16}")
        else:
            gaps[0].append(f"v_add_f32 v{V_L}, v{V_L}, v{V_TS}")
            gaps[1].append(f"v_add_f32 v{V_L+1}, v{V_L+1}, v{V_TS+1}")
        even = (u % 2 == 0)
        for g in range(32):
            if g < 16:
                ks, qb = divmod(g, 2)
                if do_qk:
                    if g == 0: o.append(always_wait(lg, *[("K", u+1, k) for k in range(5)]))
                    if g == 10: o.append(always_wait(lg, *[("K", u+1, k) for k in range(8)]))
                    o.append(qk(u+1, ks, qb))
                o.append(readV(u-1, g // 2, g % 2))
                o.extend(gaps[g])
                if g == 15 and even and do_qk:
                    o.append(always_wait(vm, ("K", u//2+1), ("V", u//2)))
                    o.append("s_barrier")
            else:
                f, qb = divmod(g - 16, 2)
                if g == 16: o.append(always_wait(lg, *[("V", u-1, k) for k in range(5)]))
                if g == 26: o.append(always_wait(lg, *[("V", u-1, k) for k in range(8)]))
                o.append(pv(u-1, f, qb))
                if do_qk and g % 2 == 0 and u + 2 < 64:
                    o.append(readK(u+2, (g-16)//2))
                o.extend(gaps[g])
                if do_qk and not opt.get("nodma"):
                    if even and g in (19, 23, 25, 27):
                        o.extend(dmaKV("K", u//2+4, (19, 23, 25, 27).index(g)))
                    if (not even) and g in (19, 23, 25, 27):
                        o.extend(dmaKV("V", (u-1)//2+2, (19, 23, 25, 27).index(g)))
        if do_sm:
            pos = u % 8 if tagpos is None else tagpos
            o.append(f"s_cbranch_vccnz L_stub{pos}")
            o.append(f"L_back{pos}:")
        return o
    units = {u: unit(u) for u in range(1, 63)}
    tail63 = unit(63, do_qk=False, tagpos="T")
    tail64 = unit(64, do_qk=False, do_sm=False)
    def emit(lines):
        for l in lines:
            if l.endswith(":"): a.label(l[:-1])
            else: a(l)
    a(f"s_mov_b32 s{S_CNT}, 7")
    a.raw(".p2align 6")
    a.label("L_attn")
    for pos in range(1, 9):
        insts = [units[u] for u in range(pos, 62, 8)]
        if pos == 6:
            a(f"s_cmp_eq_u32 s{S_CNT}, 0")
            a("s_cbranch_scc1 L_attn_tail")
        emit(fold(insts))
    a(f"s_sub_u32 s{S_CNT}, s{S_CNT}, 1")
    a("s_branch L_attn")
    a.label("L_attn_tail")
    emit([l.replace("L_stub6", "L_stubS").replace("L_back6", "L_backS") for l in units[62]])
    emit(tail63)
    emit(tail64)
    a("s_nop 7")
    a("s_nop 7")
    for qb in range(2):
        a(f"v_mov_b32 v{V_TMP+qb}, v{V_L+qb}")
    a("s_nop 1")
    for qb in range(2):
        a(f"v_permlane32_swap_b32 v{V_TMP+qb}, v{V_L+qb}")
    for qb in range(2):
        a(f"v_add_f32 v{V_L+qb}, v{V_L+qb}, v{V_TMP+qb}")
    for qb in range(2):
        a(f"v_rcp_f32 v{V_L+qb}, v{V_L+qb}")
    a(f"v_lshlrev_b32 v{V_TMP+2}, 17, v{V_T}")
    a(f"v_add_u32 v{V_TMP+2}, v{V_TMP+2}, v{V_ST}")
    a(f"v_add_u32 v{V_TMP+3}, {2*131072}, v{V_TMP+2}")
    a(f"s_lshl_b32 s{S_T1}, s{S_J}, 12")
    n = 0
    for qb in range(2):
        for dt in range(4):
            tb = 128 + (n % 2) * 32; n += 1
            base = A_O + (qb*4+dt)*16
            for i in range(16): a(f"v_accvgpr_read_b32 v{tb+i}, a{base+i}")
            for i in range(16): a(f"v_mul_f32 v{tb+i}, v{tb+i}, v{V_L+qb}")
            for i in range(8): a(f"v_cvt_pk_bf16_f32 v{tb+16+i}, v{tb+2*i}, v{tb+2*i+1}")
            for hf in range(2):
                a(f"buffer_store_dwordx4 {vr(tb+16+4*hf,4)}, v{V_TMP+2+qb}, {sr(S_O,4)}, s{S_T1} offen offset:{(4*dt+2*hf)*256}")
    a.label("L_k1_done")
    a("s_endpgm")
    for pos, parity in [(p, p % 2) for p in range(8)] + [("S", 0), ("T", 1)]:
        a.label(f"L_stub{pos}")
        a(f"s_call_b64 {sr(S_RET,2)}, L_rare{parity}")
        a(f"s_branch L_back{pos}")
    for p in range(2):
        a.label(f"L_rare{p}")
        a("s_nop 15")
        a("s_nop 15")
        for qb in range(2):
            S = V_S + p*32 + qb*16
            S1 = V_S + (1-p)*32 + qb*16
            P = V_P + p*16 + qb*8
            mx, t2, fs = V_TMP+16, V_TMP+17, V_TMP+18
            a(f"v_max3_f32 v{mx}, v{S}, v{S+1}, v{S+2}")
            for i in range(3, 15, 2):
                a(f"v_max3_f32 v{mx}, v{mx}, v{S+i}, v{S+i+1}")
            a(f"v_max_f32 v{mx}, v{mx}, v{S+15}")
            a(f"v_mov_b32 v{t2}, v{mx}")
            a("s_nop 1")
            a(f"v_permlane32_swap_b32 v{t2}, v{mx}")
            a("s_nop 1")
            a(f"v_max_f32 v{mx}, v{mx}, v{t2}")
            a(f"v_max_f32 v{mx}, s{S_FLOOR}, v{mx}")
            a(f"v_max_f32 v{fs}, 0, v{mx}")
            a(f"v_exp_f32 v{fs}, -v{fs}")
            a(f"v_sub_f32 v{t2}, v{V_NEGM+16*qb}, v{mx}")
            for i in range(16):
                a(f"v_mov_b32 v{V_NEGM+16*qb+i}, v{t2}")
            for i in range(16):
                a(f"v_sub_f32 v{S1+i}, v{S1+i}, v{mx}")
            for i in range(16):
                a(f"v_sub_f32 v{V_E+i}, v{S+i}, v{mx}")
            for i in range(16):
                a(f"v_exp_f32 v{V_E+i}, v{V_E+i}")
            a(f"v_mul_f32 v{V_L+qb}, v{V_L+qb}, v{fs}")
            a(f"v_add_f32 v{V_TS+qb}, v{V_E}, v{V_E+1}")
            for i in range(2, 16):
                a(f"v_add_f32 v{V_TS+qb}, v{V_TS+qb}, v{V_E+i}")
            for i in range(8):
                a(f"v_cvt_pk_bf16_f32 v{P+i}, v{V_E+2*i}, v{V_E+2*i+1}")
            a(f"s_cmp_lg_u32 s{S_FLOOR}, 0")
            a(f"s_cbranch_scc1 L_rare{p}_skip{qb}")
            for blk in range(4):
                for i in range(16): a(f"v_accvgpr_read_b32 v{V_E+i}, a{A_O+qb*64+blk*16+i}")
                for i in range(16): a(f"v_mul_f32 v{V_E+i}, v{V_E+i}, v{fs}")
                for i in range(16): a(f"v_accvgpr_write_b32 a{A_O+qb*64+blk*16+i}, v{V_E+i}")
            a.label(f"L_rare{p}_skip{qb}")
        a("s_nop 3")
        a(f"s_setpc_b64 {sr(S_RET,2)}")
    a.raw(kdesc(name, 512, 64, 256))
    return a.text()
```

```python
from asmlib import *
from k1 import fold, always_wait, WS_H, WS_O
WS_P = 0x3000000
CH = 36864
K2_LDS = 4 * CH

def gen_k2(name, opt=None):
    opt = opt or {}
    a = Asm()
    vm = Counter("vmcnt", 63); lg = Counter("lgkmcnt", 15)
    S_WT, S_B0, S_B1, S_PO = 4, 8, 12, 16
    S_W, S_PART, S_RB, S_CB, S_CNT, S_WOFF, S_BOFF, S_M0, S_T0, S_T1, S_T2, S_STR = range(24, 36)
    V_DW = 2
    V_L16 = 11
    V_RA = 12
    V_A = 20
    V_ACC = 68
    A_B = 0
    a.raw(kstart(name))
    a("s_cmp_ge_u32 s2, 256")
    a("s_cbranch_scc1 L_k2_done")
    a("s_load_dwordx2 s[40:41], s[0:1], 32")
    a("s_load_dwordx2 s[42:43], s[0:1], 64")
    a("s_load_dwordx2 s[44:45], s[0:1], 88")
    a("v_lshrrev_b32 v1, 6, v0")
    a("v_and_b32 v0, 63, v0")
    a(f"v_readfirstlane_b32 s{S_W}, v1")
    a(f"s_bfe_u32 s{S_PART}, s2, 0x20001")
    a(f"s_and_b32 s{S_T0}, s2, 1")
    a(f"s_lshl_b32 s{S_T0}, s{S_T0}, 3")
    a(f"s_bfe_u32 s{S_T1}, s2, 0x30003")
    a(f"s_add_u32 s{S_RB}, s{S_T0}, s{S_T1}")
    a(f"s_lshr_b32 s{S_CB}, s2, 6")
    a(f"v_lshlrev_b32 v{V_L16}, 4, v0")
    a(f"s_mul_i32 s{S_T0}, s{S_W}, {32*1152}")
    a(f"s_mul_i32 s{S_T1}, s{S_CB}, 288")
    a(f"s_add_u32 s{S_T0}, s{S_T0}, s{S_T1}")
    a(f"s_mov_b32 s{S_T1}, 3641")
    for i in range(9):
        a(f"v_add_u32 v140, {64*i}, v0")
        a(f"v_mul_lo_u32 v141, v140, s{S_T1}")
        a("v_lshrrev_b32 v141, 16, v141")
        a("v_mul_u32_u24 v142, 18, v141")
        a("v_sub_u32 v142, v140, v142")
        a("v_mul_u32_u24 v141, 1152, v141")
        a("v_lshl_add_u32 v141, v142, 4, v141")
        a(f"v_subrev_u32 v141, {1024*(i%4)}, v141")
        a(f"v_add_u32 v{V_DW+i}, s{S_T0}, v141")
    a("v_lshrrev_b32 v140, 4, v0")
    a("v_and_b32 v141, 1, v140")
    a("v_bfe_u32 v142, v0, 2, 2")
    a("v_and_b32 v143, 3, v0")
    a("v_lshl_add_u32 v142, v140, 3, v142")
    for i4 in range(2):
        a(f"v_xor_b32 v144, {i4}, v141")
        a("v_lshl_add_u32 v144, v144, 2, v142")
        a("v_mul_u32_u24 v144, 288, v144")
        a("v_lshl_add_u32 v144, v143, 3, v144")
        for sl in range(4):
            a(f"v_add_u32 v{V_RA+2*sl+i4}, {sl*CH}, v144")
    a(f"s_mul_i32 s{S_M0}, s{S_W}, 9216")
    a("s_waitcnt lgkmcnt(0)")
    a(f"s_and_b32 s{S_T2}, s{S_PART}, 1")
    a(f"s_cmp_lt_u32 s{S_PART}, 2")
    a(f"s_cselect_b32 s46, s40, s42")
    a(f"s_cselect_b32 s47, s41, s43")
    a(f"s_cselect_b32 s{S_CNT}, 16, 18")
    a(f"s_cselect_b32 s48, {WS_O>>22}, {WS_H>>22}")
    a("s_lshl_b32 s48, s48, 22")
    a(f"s_lshl_b32 s{S_STR}, s{S_CNT}, 13")
    a(f"s_mul_i32 s49, s{S_CNT}, {128*1152}")
    a(f"s_mul_i32 s{S_T0}, s49, s{S_T2}")
    a(f"s_add_u32 s{S_WT}, s46, s{S_T0}")
    a(f"s_addc_u32 s{S_WT+1}, s47, 0")
    a(f"s_and_b32 s{S_WT+1}, s{S_WT+1}, 0xffff")
    a(f"s_mov_b32 s{S_WT+2}, s49")
    a(f"s_mov_b32 s{S_WT+3}, 0x20000")
    a(f"s_lshr_b32 s49, s{S_STR}, 1")
    a(f"s_lshl_b32 s{S_T0}, s{S_RB}, 3")
    a(f"s_lshl_b32 s{S_T1}, s{S_W}, 1")
    a(f"s_add_u32 s{S_T0}, s{S_T0}, s{S_T1}")
    a(f"s_mul_i32 s{S_T0}, s{S_T0}, s{S_STR}")
    a(f"s_mul_i32 s{S_T1}, s49, s{S_T2}")
    a(f"s_add_u32 s{S_T0}, s{S_T0}, s{S_T1}")
    a(f"s_add_u32 s{S_T0}, s{S_T0}, s48")
    for nb, sb in enumerate((S_B0, S_B1)):
        if nb: a(f"s_add_u32 s{S_T0}, s{S_T0}, s{S_STR}")
        a(f"s_add_u32 s{sb}, s44, s{S_T0}")
        a(f"s_addc_u32 s{sb+1}, s45, 0")
        a(f"s_and_b32 s{sb+1}, s{sb+1}, 0xffff")
        a(f"s_mov_b32 s{sb+2}, s49")
        a(f"s_mov_b32 s{sb+3}, 0x20000")
    a(f"s_mov_b32 s{S_WOFF}, 0")
    a(f"s_mov_b32 s{S_BOFF}, 0")
    def dmaW(c, i):
        vm.issue(("W", c))
        l = []
        if i % 4 == 0:
            l += [f"s_add_u32 m0, s{S_M0}, {(c%4)*CH + 1024*i}", "s_nop 0"]
        l.append(f"buffer_load_dwordx4 v{V_DW+i}, {sr(S_WT,4)}, s{S_WOFF} offen offset:{1024*(i%4)} lds")
        if i == 8: l.append(f"s_add_u32 s{S_WOFF}, s{S_WOFF}, {128*1152}")
        return l
    def Breg(c, ks, nb): return A_B + (((c % 4) * 4 + ks) * 2 + nb) * 4
    def loadB(c, ks, nb):
        vm.issue(("B", c, ks))
        l = [f"buffer_load_dwordx4 {ar(Breg(c,ks,nb),4)}, v{V_L16}, {sr((S_B0,S_B1)[nb],4)}, s{S_BOFF} offen offset:{1024*ks}"]
        if ks == 3 and nb == 1: l.append(f"s_add_u32 s{S_BOFF}, s{S_BOFF}, 4096")
        return l
    for c in range(3):
        for i in range(9): a(dmaW(c, i))
        for ks in range(4):
            for nb in range(2): a(loadB(c, ks, nb))
    a(f"s_add_u32 s{S_PO}, s44, {WS_P}")
    a(f"s_addc_u32 s{S_PO+1}, s45, 0")
    a(f"s_and_b32 s{S_PO+1}, s{S_PO+1}, 0xffff")
    a(f"s_mov_b32 s{S_PO+2}, {4*4718592}")
    a(f"s_mov_b32 s{S_PO+3}, 0x20000")
    for i in range(72): a(f"v_mov_b32 v{V_ACC+i}, 0")
    AHEAD = 6
    def readA(x, i4):
        c, rem = divmod(x, 36)
        ks, T = divmod(rem, 9)
        lg.issue(("A", x))
        return f"ds_read_b64_tr_b16 {vr(V_A+(x%12)*4+2*i4,2)}, v{V_RA+2*(c%4)+i4} offset:{ks*9216+T*32}"
    a(vm.wait(("W", 0)))
    a("s_barrier")
    for x in range(AHEAD):
        a(readA(x, 0)); a(readA(x, 1))
    def chunk(c):
        o = []
        vq = [("W", i) for i in range(9)] + [("B", ks, nb) for ks in range(4) for nb in range(2)]
        vgaps = list(range(3, 3 + 3*17, 3))
        for x0 in range(36):
            x = 36*c + x0
            ks, T = divmod(x0, 9)
            for nb in range(2):
                g = 2*x0 + nb
                if T == 0 and nb == 0: o.append(always_wait(vm, ("B", c, ks)))
                if nb == 0 and x0 % 2 == 0: o.append(always_wait(lg, ("A", x), ("A", x+1)))
                acc = vr(V_ACC + (2*T+nb)*4, 4)
                o.append(f"v_mfma_f32_16x16x32_bf16 {acc}, {vr(V_A+(x%12)*4,4)}, {ar(Breg(c,ks,nb),4)}, {acc}")
                if g == 1:
                    o.append("s_barrier")
                if g == 2*(36-AHEAD) - 1:
                    o.append(always_wait(vm, ("W", c+1)))
                    o.append("s_barrier")
                o.append(readA(x + AHEAD, nb))
                if g in vgaps:
                    op = vq[vgaps.index(g)]
                    o.extend(dmaW(c+3, op[1]) if op[0] == "W" else loadB(c+3, op[1], op[2]))
        return o
    chunks = [chunk(c) for c in range(18)]
    a.raw(".p2align 6")
    a.label("L_k2_loop")
    for pos in range(4):
        a(fold([chunks[c] for c in range(pos, 18, 4)]))
        a(f"s_sub_u32 s{S_CNT}, s{S_CNT}, 1")
        a(f"s_cmp_eq_u32 s{S_CNT}, 0")
        if pos < 3:
            if pos == 1: a("s_cbranch_scc1 L_k2_epi")
        else:
            a("s_cbranch_scc0 L_k2_loop")
    a.label("L_k2_epi")
    a("s_nop 7")
    a(f"s_lshl_b32 s{S_T0}, s{S_RB}, 2")
    a(f"s_add_u32 s{S_T0}, s{S_T0}, s{S_CB}")
    a(f"s_lshl_b32 s{S_T0}, s{S_T0}, 2")
    a(f"s_add_u32 s{S_T0}, s{S_T0}, s{S_W}")
    a(f"s_mul_i32 s{S_T0}, s{S_T0}, {18*1024}")
    a(f"s_mul_i32 s{S_T1}, s{S_PART}, 4718592")
    a(f"s_add_u32 s{S_T0}, s{S_T0}, s{S_T1}")
    for t in range(18):
        if t % 4 == 0 and t: a(f"s_add_u32 s{S_T0}, s{S_T0}, 4096")
        a(f"buffer_store_dwordx4 {vr(V_ACC+4*t,4)}, v{V_L16}, {sr(S_PO,4)}, s{S_T0} offen offset:{1024*(t%4)}")
    a.label("L_k2_done")
    a("s_endpgm")
    a.raw(kdesc(name, 148+128, 64, 148))
    return a.text()

def gen_k3(name):
    a = Asm()
    a.raw(kstart(name))
    a("s_cmp_ge_u32 s2, 1152")
    a("s_cbranch_scc1 L_k3_done")
    a("s_load_dwordx2 s[4:5], s[0:1], 0")
    a("s_load_dwordx2 s[8:9], s[0:1], 72")
    a("s_load_dwordx2 s[12:13], s[0:1], 88")
    a("v_lshrrev_b32 v1, 6, v0")
    a("v_and_b32 v0, 63, v0")
    a("v_readfirstlane_b32 s16, v1")
    a("s_lshl_b32 s17, s2, 2")
    a("s_add_u32 s17, s17, s16")
    a("s_mul_i32 s18, s17, 3641")
    a("s_lshr_b32 s18, s18, 16")
    a("s_mul_i32 s19, s18, 18")
    a("s_sub_u32 s19, s17, s19")
    a("s_and_b32 s20, s18, 3")
    a("s_bfe_u32 s21, s18, 0x20002")
    a("s_lshr_b32 s22, s18, 4")
    a("s_lshl_b32 s22, s22, 7")
    a("s_lshl_b32 s20, s20, 5")
    a("s_add_u32 s22, s22, s20")
    a("s_and_b32 s20, s19, 1")
    a("s_lshl_b32 s20, s20, 4")
    a("s_add_u32 s22, s22, s20")
    a("s_mul_i32 s22, s22, 1152")
    a("s_mul_i32 s21, s21, 288")
    a("s_add_u32 s22, s22, s21")
    a("s_lshr_b32 s20, s19, 1")
    a("s_lshl_b32 s20, s20, 5")
    a("s_add_u32 s22, s22, s20")
    a("v_and_b32 v1, 15, v0")
    a("v_mul_u32_u24 v1, 1152, v1")
    a("v_lshrrev_b32 v2, 4, v0")
    a("v_lshl_add_u32 v1, v2, 3, v1")
    a("v_lshlrev_b32 v2, 4, v0")
    a("s_lshl_b32 s23, s17, 10")
    a("s_waitcnt lgkmcnt(0)")
    for b, n in ((4, 2359296), (8, 2359296)):
        a(f"s_and_b32 s{b+1}, s{b+1}, 0xffff")
        a(f"s_mov_b32 s{b+2}, {n}")
        a(f"s_mov_b32 s{b+3}, 0x20000")
    a(f"s_add_u32 s12, s12, {WS_P}")
    a("s_addc_u32 s13, s13, 0")
    a("s_and_b32 s13, s13, 0xffff")
    a(f"s_mov_b32 s14, {4*4718592}")
    a("s_mov_b32 s15, 0x20000")
    for p in range(4):
        a(f"buffer_load_dwordx4 {vr(4+4*p,4)}, v2, s[12:15], s23 offen")
        a("s_add_u32 s23, s23, 4718592")
    a("buffer_load_dwordx2 v[20:21], v1, s[4:7], s22 offen")
    a("s_waitcnt vmcnt(0)")
    a(final_math(4, 8, 12, 16, 20, 24, "s24"))
    a("buffer_store_dwordx2 v[20:21], v1, s[8:11], s22 offen")
    a.label("L_k3_done")
    a("s_endpgm")
    a.raw(kdesc(name, 40, 32, 40))
    assert all((wv * 3641) >> 16 == wv // 18 for wv in range(4608))
    return a.text()

def final_math(s0, s1, d0, d1, x, t, smask):
    o = [f"s_mov_b32 {smask}, 0xffff0000"]
    for i in range(4):
        o.append(f"v_add_f32 v{s0+i}, v{s0+i}, v{s1+i}")
        o.append(f"v_add_f32 v{d0+i}, v{d0+i}, v{d1+i}")
    def rnd(b):
        r = []
        for i in range(2):
            r.append(f"v_cvt_pk_bf16_f32 v{t+i}, v{b+2*i}, v{b+2*i+1}")
        for i in range(2):
            r.append(f"v_lshlrev_b32 v{b+2*i}, 16, v{t+i}")
            r.append(f"v_and_b32 v{b+2*i+1}, {smask}, v{t+i}")
        return r
    o += rnd(s0) + rnd(d0)
    L2E = f32(-1.4426950408889634)
    for i in range(4): o.append(f"v_mul_f32 v{d1+i}, {L2E}, v{d0+i}")
    for i in range(4): o.append(f"v_exp_f32 v{d1+i}, v{d1+i}")
    for i in range(4): o.append(f"v_add_f32 v{d1+i}, 1.0, v{d1+i}")
    for i in range(4): o.append(f"v_rcp_f32 v{d1+i}, v{d1+i}")
    for i in range(4): o.append(f"v_mul_f32 v{d0+i}, v{d0+i}, v{d1+i}")
    o += rnd(d0)
    for i in range(4): o.append(f"v_mul_f32 v{s0+i}, v{s0+i}, v{d0+i}")
    o += rnd(s0)
    for i in range(2):
        o.append(f"v_lshlrev_b32 v{d0+2*i}, 16, v{x+i}")
        o.append(f"v_and_b32 v{d0+2*i+1}, {smask}, v{x+i}")
    for i in range(4): o.append(f"v_add_f32 v{s0+i}, v{s0+i}, v{d0+i}")
    for i in range(2): o.append(f"v_cvt_pk_bf16_f32 v{x+i}, v{s0+2*i}, v{s0+2*i+1}")
    return o
```

```python
import sys
from asmlib import *
import k0, k1, k2
HDR = open("recurrent_scan__mha_block_cached__glu_gated_bilinear__prompt.s.ref").read().split("; Override launch")[0]
def build(opt=None):
    opt = opt or {}
    launches = [("ln_kernel", 256, 64, 0), ("attn_kernel", 256, 256, k1.LDS_BYTES), ("outp_kernel", 256, 256, k2.K2_LDS)]
    if opt.get('k2twice'): launches.append(launches[-1])
    if opt.get('ln2'): launches = [launches[0]] * opt['ln2'] + launches[1:]
    if opt.get('lnend'): launches.append(launches[0])
    s = HDR
    for n, g, b, l in launches:
        s += f"; @launch kernel={n} grid=({g},1,1) block=({b},1,1) lds={l}\n"
    s += '.amdgcn_target "amdgcn-amd-amdhsa--gfx950"\n'
    s += k0.gen_k0("ln_kernel", opt) + k1.gen_k1("attn_kernel", opt) + k2.gen_k2("outp_kernel", opt)
    return s
if __name__ == "__main__":
    out = sys.argv[1] if len(sys.argv) > 1 else "recurrent_scan__mha_block_cached__glu_gated_bilinear__prompt.s"
    opt = dict(kv.split("=") for kv in sys.argv[2:])
    opt = {k: int(v) for k, v in opt.items()}
    open(out, "w").write(build(opt))
    print("wrote", out)
```

```python
class Counter:
    def __init__(self, name, maxv):
        self.name, self.maxv = name, maxv
        self.q = []
    def issue(self, tag):
        self.q.append(tag)
    def need(self, *tags):
        last = -1
        for i, t in enumerate(self.q):
            if t in tags:
                last = i
        if last < 0:
            return None
        n = len(self.q) - 1 - last
        return n
    def done_upto(self, n):
        if n == 0: self.q = []
        elif n < len(self.q): self.q = self.q[-n:]
    def wait(self, *tags):
        n = self.need(*tags)
        if n is None:
            return None
        n = min(n, self.maxv)
        self.done_upto(n)
        return f"s_waitcnt {self.name}({n})"

def vr(b, n=1):
    return f"v{b}" if n == 1 else f"v[{b}:{b+n-1}]"
def ar(b, n=1):
    return f"a{b}" if n == 1 else f"a[{b}:{b+n-1}]"
def sr(b, n=1):
    return f"s{b}" if n == 1 else f"s[{b}:{b+n-1}]"

class Asm:
    def __init__(self):
        self.lines = []
    def __call__(self, s):
        if s is None: return
        if isinstance(s, (list, tuple)):
            for x in s: self(x)
            return
        self.lines.append("    " + s)
    def label(self, l):
        self.lines.append(l + ":")
    def raw(self, s):
        self.lines.append(s)
    def c(self, s):
        self.lines.append("    ; " + s)
    def text(self):
        return "\n".join(self.lines) + "\n"

def kdesc(name, vgpr, sgpr, accum, wgy=False):
    return f""".section .rodata,"a"
.p2align 6
.amdhsa_kernel {name}
  .amdhsa_next_free_vgpr {vgpr}
  .amdhsa_next_free_sgpr {sgpr}
  .amdhsa_accum_offset {accum}
  .amdhsa_group_segment_fixed_size 0
  .amdhsa_kernarg_size 96
  .amdhsa_user_sgpr_count 2
  .amdhsa_user_sgpr_kernarg_segment_ptr 1
  .amdhsa_system_sgpr_workgroup_id_x 1
  .amdhsa_float_denorm_mode_32 3
.end_amdhsa_kernel
.text
"""
def kstart(name):
    return f""".text
.globl {name}
.p2align 8
.type {name},@function
{name}:
"""
import struct
def f32(x):
    return "0x%08x" % struct.unpack("<I", struct.pack("<f", x))[0]

class Stamps:
    def __init__(self, a, on):
        self.a, self.on, self.n = a, on, 0
    def __call__(self, real=False):
        if not self.on: return
        r = 64 + 2 * self.n; self.n += 1
        self.a(f"{'s_memrealtime' if real else 's_memtime'} s[{r}:{r+1}]")
    def dump(self, ws_lo, ws_hi, off, s_wave, vt=1):
        if not self.on: return
        a = self.a
        a("s_waitcnt lgkmcnt(0)")
        a(f"s_add_u32 s96, s{ws_lo}, {off}")
        a(f"s_addc_u32 s97, s{ws_hi}, 0")
        a("s_and_b32 s97, s97, 0xffff")
        a("s_mov_b32 s98, 0x100000")
        a("s_mov_b32 s99, 0x20000")
        a("s_lshl_b32 s100, s2, 2")
        a(f"s_add_u32 s100, s100, s{s_wave}")
        a("s_lshl_b32 s100, s100, 7")
        a(f"v_mov_b32 v{vt+1}, 0")
        a("s_mov_b64 exec, 1")
        for i in range(self.n):
            a(f"v_mov_b32 v{vt}, s{64+2*i}")
            a(f"buffer_store_dword v{vt}, v{vt+1}, s[96:99], s100 offen offset:{4*i}")
            a("s_nop 1")
```

```python
from asmlib import *
WS_XN = 0
def gen_k0(name):
    a = Asm()
    a.raw(kstart(name))
    a("s_cmp_ge_u32 s2, 256")
    a("s_cbranch_scc1 L_k0_done")
    a("s_load_dwordx2 s[4:5], s[0:1], 0")
    a("s_load_dwordx2 s[8:9], s[0:1], 88")
    a("v_lshrrev_b32 v1, 3, v0")
    a("v_and_b32 v2, 7, v0")
    a("s_lshl_b32 s3, s2, 3")
    a("v_add_u32 v1, s3, v1")
    a("v_mul_u32_u24 v3, 1152, v1")
    a("v_lshl_add_u32 v3, v2, 4, v3")
    a("v_lshrrev_b32 v4, 4, v1")
    a("v_mul_u32_u24 v4, 18432, v4")
    a("v_and_b32 v5, 15, v1")
    a("v_lshl_add_u32 v4, v5, 4, v4")
    a("v_lshl_add_u32 v4, v2, 8, v4")
    a("s_waitcnt lgkmcnt(0)")
    a("s_mov_b32 s6, 2359296")
    a("s_mov_b32 s7, 0x20000")
    a("s_and_b32 s5, s5, 0xffff")
    a("s_mov_b32 s10, 2359296")
    a("s_mov_b32 s11, 0x20000")
    a("s_and_b32 s9, s9, 0xffff")
    D = 8
    for i in range(9):
        a(f"buffer_load_dwordx4 {vr(D+4*i,4)}, v3, s[4:7], 0 offen offset:{128*i}")
    F = 44
    a("s_mov_b32 s12, 0xffff0000")
    for i in range(9):
        a(f"s_waitcnt vmcnt({8-i})")
        for r in range(4):
            src = D + 4*i + r
            a(f"v_lshlrev_b32 v{F+8*i+2*r}, 16, v{src}")
            a(f"v_and_b32 v{F+8*i+2*r+1}, s12, v{src}")
        for r in range(4):
            if i == 0 and r == 0:
                a(f"v_mov_b32 v6, v{F}")
                a(f"v_mov_b32 v7, v{F+1}")
            else:
                a(f"v_add_f32 v6, v6, v{F+8*i+2*r}")
                a(f"v_add_f32 v7, v7, v{F+8*i+2*r+1}")
    def red8(v):
        a("s_nop 1")
        a(f"v_add_f32_dpp {v}, {v}, {v} quad_perm:[1,0,3,2] row_mask:0xf bank_mask:0xf")
        a("s_nop 1")
        a(f"v_add_f32_dpp {v}, {v}, {v} quad_perm:[2,3,0,1] row_mask:0xf bank_mask:0xf")
        a("s_nop 1")
        a(f"v_add_f32_dpp {v}, {v}, {v} row_half_mirror row_mask:0xf bank_mask:0xf")
    a("v_add_f32 v6, v6, v7")
    red8("v6")
    a(f"v_mul_f32 v6, {f32(1.0/576)}, v6")
    a("v_mov_b32 v7, 0")
    a("v_mov_b32 v5, 0")
    for e in range(72):
        t = 116 + (e % 4)
        acc = "v7" if e % 2 == 0 else "v5"
        a(f"v_sub_f32 v{t}, v{F+e}, v6")
        a(f"v_fmac_f32 {acc}, v{t}, v{t}")
    a("v_add_f32 v7, v7, v5")
    red8("v7")
    a(f"v_mul_f32 v7, {f32(1.0/576)}, v7")
    def rb(v):
        a(f"v_cvt_pk_bf16_f32 {v}, {v}, {v}")
        a(f"v_lshlrev_b32 {v}, 16, {v}")
    rb("v6"); rb("v7")
    a(f"v_add_f32 v7, {f32(1e-5)}, v7")
    rb("v7")
    a("v_sqrt_f32 v7, v7")
    a("s_nop 0")
    rb("v7")
    a("v_rcp_f32 v7, v7")
    a("s_nop 0")
    a("v_mul_f32 v6, v6, v7")
    for i in range(9):
        for r in range(4):
            e = F + 8*i + 2*r
            a(f"v_fma_f32 v{e}, v{e}, v7, -v6")
            a(f"v_fma_f32 v{e+1}, v{e+1}, v7, -v6")
            a(f"v_cvt_pk_bf16_f32 v{D+4*i+r}, v{e}, v{e+1}")
        a(f"s_mov_b32 s13, {2048*i}")
        a(f"buffer_store_dwordx4 {vr(D+4*i,4)}, v4, s[8:11], s13 offen")
    a.label("L_k0_done")
    a("s_endpgm")
    a.raw(kdesc(name, 120, 24, 120))
    return a.text()
```

```python
from asmlib import *
import math, re
WS_XN = 0
WS_H = 0x400000
WS_O = 0x1800000
LAYOUT = "pair"

KBASE = 0
VBASE = 65536
WPITCH = 1056
WSLOT = 32 * WPITCH
NW = 4
WBASE = 163840 - NW * WSLOT
LDS_FLAG = 131072
LDS_BYTES = 163840

S_K, S_V, S_XN, S_H, S_O = 4, 8, 12, 16, 20
S_W, S_J, S_QB, S_CNT, S_KOFF, S_M0KV, S_THR = 24, 25, 26, 27, 28, 29, 30
S_C, S_BOFF, S_M0W, S_VOFF, S_T0, S_T1 = 34, 35, 36, 37, 38, 39

V_WA = 2
V_WS = 4
V_BO = 6
V_DK, V_DV = 10, 11
V_L16 = 12
V_GU = 64
V_WQ = 68
V_B = 16
V_A = 48
V_KA = 80
V_VA = 84
V_ONES = 92
V_ACC8 = 96
V_ACCQ = 128
V_Q = 16
V_TMP = 96
V_S = 128
V_NEGM = 192
V_P = 224
A_O, A_L, A_K, A_V = 0, 128, 144, 176

def fold(insts):
    base = insts[0]
    assert all(len(x) == len(base) for x in insts), [len(x) for x in insts]
    out = []
    for i, l in enumerate(base):
        col = [x[i] for x in insts]
        if all(c == l for c in col):
            out.append(l); continue
        ms = [re.fullmatch(r"s_waitcnt (\w+)\((\d+)\)", c) for c in col]
        assert all(ms) and len({m.group(1) for m in ms}) == 1, col
        out.append(f"s_waitcnt {ms[0].group(1)}({min(int(m.group(2)) for m in ms)})")
    return out

def always_wait(cnt, *tags):
    w = cnt.wait(*tags)
    return w if w else f"s_waitcnt {cnt.name}({cnt.maxv})"

MF = "v_mfma_f32_16x16x32_bf16"
def acc_reg(X, nt):
    if X >= 18: return ("v", V_ACCQ + ((X-18)*4+nt)*4)
    up, t = divmod(X, 9)
    if t == 8: return ("v", V_ACC8 + up*16 + nt*4)
    return ("a", ((t*2+up)*4+nt)*4)
def rg(r, n=4): return (vr if r[0] == "v" else ar)(r[1], n)

def gen_k1(name, opt=None):
    opt = opt or {}
    a = Asm()
    vm = Counter("vmcnt", 63)
    lg = Counter("lgkmcnt", 15)
    a.raw(kstart(name))
    a("s_cmp_ge_u32 s2, 256")
    a("s_cbranch_scc1 L_k1_done")
    st = Stamps(a, opt.get("stamp"))
    st(True); st()
    a("s_load_dwordx4 s[40:43], s[0:1], 8")
    a("s_load_dwordx2 s[44:45], s[0:1], 24")
    a("s_load_dwordx4 s[48:51], s[0:1], 48")
    a("s_load_dwordx2 s[46:47], s[0:1], 88")
    a("v_lshrrev_b32 v1, 6, v0")
    a("v_and_b32 v0, 63, v0")
    a(f"v_readfirstlane_b32 s{S_W}, v1")
    a(f"s_and_b32 s{S_T0}, s2, 7")
    a(f"s_lshl_b32 s{S_T0}, s{S_T0}, 2")
    a(f"s_lshr_b32 s{S_T1}, s2, 3")
    a(f"s_and_b32 s{S_T1}, s{S_T1}, 3")
    a(f"s_add_u32 s{S_J}, s{S_T0}, s{S_T1}")
    a(f"s_lshr_b32 s{S_QB}, s2, 5")
    a(f"v_lshlrev_b32 v{V_L16}, 4, v0")
    a(f"s_mul_i32 s{S_T1}, s{S_J}, 288")
    a(f"s_lshl_b32 s{S_CNT}, s{S_J}, 8")
    a("v_subrev_u32 v106, 52, v0")
    a("v_subrev_u32 v107, 36, v0")
    a("v_cmp_gt_u32 vcc, 52, v0")
    a("v_mov_b32 v112, 8192")
    a("v_mov_b32 v113, 9216")
    a("v_cndmask_b32 v106, v106, v107, vcc")
    a(f"v_lshl_add_u32 v106, v106, 4, s{S_CNT}")
    a("v_subrev_u32 v107, 18, v0")
    a("v_cmp_gt_u32 vcc, 18, v0")
    a(f"s_mul_i32 s{S_M0W}, s{S_W}, {WPITCH}")
    a(f"s_add_u32 s{S_M0W}, s{S_M0W}, {WBASE}")
    a("v_cndmask_b32 v107, v107, v0, vcc")
    a(f"v_lshl_add_u32 v107, v107, 4, s{S_T1}")
    a(f"s_lshl_b32 s{S_T0}, s{S_QB}, 4")
    a(f"s_lshl_b32 s{S_T1}, s{S_W}, 2")
    a(f"s_add_u32 s{S_T0}, s{S_T0}, s{S_T1}")
    a(f"s_mul_i32 s{S_T1}, s{S_T0}, 18432")
    a(f"v_add_u32 v{V_BO}, s{S_T1}, v{V_L16}")
    for nt in range(1, 4): a(f"v_add_u32 v{V_BO+nt}, {18432*nt}, v{V_BO}")
    a("s_waitcnt lgkmcnt(0)")
    a("v_mov_b32 v108, s50")
    a("v_mov_b32 v109, s51")
    a("v_mov_b32 v110, s48")
    a("v_mov_b32 v111, s49")
    a("v_cndmask_b32 v108, v108, v110, vcc")
    a("v_cndmask_b32 v109, v109, v111, vcc")
    a("v_cmp_gt_u32 vcc, 36, v0")
    a("v_mov_b32 v110, s44")
    a("v_mov_b32 v111, s45")
    a("v_cndmask_b32 v108, v110, v108, vcc")
    a("v_cndmask_b32 v109, v111, v109, vcc")
    a("v_cndmask_b32 v106, v106, v107, vcc")
    a("v_cndmask_b32 v112, v112, v113, vcc")
    a(f"v_mul_lo_u32 v113, v112, s{S_W}")
    a("v_add_u32 v106, v106, v113")
    a("v_mov_b32 v107, 0")
    a(f"v_lshl_add_u64 {vr(V_WA,2)}, v[106:107], 0, v[108:109]")
    a(f"v_lshlrev_b32 v{V_WS}, 2, v112")
    a(f"v_mov_b32 v{V_WS+1}, 0")
    def srd(d, lo, hi, off_s, off_imm, nrec):
        if off_s is not None: a(f"s_add_u32 s{d}, s{lo}, s{off_s}")
        else: a(f"s_add_u32 s{d}, s{lo}, {off_imm}")
        a(f"s_addc_u32 s{d+1}, s{hi}, 0")
        a(f"s_and_b32 s{d+1}, s{d+1}, 0xffff")
        a(f"s_mov_b32 s{d+2}, {nrec}")
        a(f"s_mov_b32 s{d+3}, 0x20000")
    srd(S_XN, 46, 47, None, WS_XN, 2359296)
    a(f"s_mov_b32 s{S_BOFF}, 0")

    def dmaW_m0(ks, i):
        kg, i4 = divmod(i, 2)
        return f"s_add_u32 m0, s{S_M0W}, {(ks % NW)*WSLOT + (16*i4 + 4*kg)*WPITCH}"
    def dmaW(ks, i):
        vm.issue(("W", ks))
        return f"global_load_lds_dwordx4 {vr(V_WA,2)}, off"
    dmaW_adv = f"v_lshl_add_u64 {vr(V_WA,2)}, {vr(V_WS,2)}, 0, {vr(V_WA,2)}"
    def loadB(ks, nt):
        vm.issue(("B", ks))
        return f"buffer_load_dwordx4 {vr(V_B + (ks%2)*16 + 4*nt,4)}, v{V_BO+nt}, {sr(S_XN,4)}, s{S_BOFF} offen"
    B_adv = f"s_add_u32 s{S_BOFF}, s{S_BOFF}, 1024"
    for ks in range(3):
        for i in range(8):
            a(dmaW_m0(ks, i)); a("s_nop 0"); a(dmaW(ks, i)); a(dmaW_adv)
        if ks == 0:
            for nt in range(4): a(loadB(0, nt))
            a(B_adv)
    a("v_lshrrev_b32 v96, 4, v0")
    a("v_and_b32 v97, 15, v0")
    a("v_bfe_u32 v98, v0, 2, 2")
    a("v_and_b32 v99, 3, v0")
    a("v_lshl_add_u32 v100, v96, 2, v98")
    a(f"v_mul_u32_u24 v100, {WPITCH}, v100")
    a("v_lshl_add_u32 v101, v99, 3, v100")
    a("v_lshl_add_u32 v102, v99, 4, v100")
    for sl in range(NW):
        a(f"v_add_u32 v{V_GU+sl}, {WBASE + sl*WSLOT}, v101")
        a(f"v_add_u32 v{V_WQ+sl}, {WBASE + sl*WSLOT + 576}, v102")
    a(f"s_lshl_b32 s{S_T1}, s{S_J}, 19")
    srd(S_K, 40, 41, S_T1, None, 524288)
    srd(S_V, 42, 43, S_T1, None, 524288)
    a(f"s_mul_i32 s{S_T1}, s{S_T0}, 147456")
    a(f"s_add_u32 s{S_T1}, s{S_T1}, {WS_H}")
    srd(S_H, 46, 47, S_T1, None, 4*147456)
    a(f"s_lshl_b32 s{S_T1}, s{S_T0}, 17")
    a(f"s_add_u32 s{S_T1}, s{S_T1}, {WS_O}")
    srd(S_O, 46, 47, S_T1, None, 4*131072)
    a(f"s_lshl_b32 s{S_M0KV}, s{S_W}, 12")
    a(f"s_mov_b32 s{S_THR}, {f32(2.0**opt.get('thr', 90))}")
    a(f"s_mov_b32 s{S_C}, {f32(math.log2(math.e)/math.sqrt(128.0))}")
    a(f"s_lshl_b32 s{S_T1}, s{S_W}, 4")
    a(f"v_add_u32 v100, s{S_T1}, v96")
    a("v_lshlrev_b32 v100, 8, v100")
    a(f"s_lshl_b32 s{S_T1}, s{S_W}, 2")
    a(f"v_add_u32 v101, s{S_T1}, v96")
    a("v_xor_b32 v101, v101, v97")
    a(f"v_lshl_add_u32 v{V_DK}, v101, 4, v100")
    a(f"s_and_b32 s{S_T1}, s{S_W}, 1")
    a(f"s_lshl_b32 s{S_T1}, s{S_T1}, 1")
    a(f"v_lshl_add_u32 v101, v96, 2, s{S_T1}")
    a("v_xor_b32 v101, v101, v97")
    a(f"v_lshl_add_u32 v{V_DV}, v101, 4, v100")
    a("v_lshl_add_u32 v100, v98, 4, v99")
    a("v_lshlrev_b32 v100, 8, v100")
    a("v_xor_b32 v101, v96, v97")
    for ks in range(4):
        a(f"v_xor_b32 v102, {4*ks}, v101")
        a(f"v_lshl_add_u32 v{V_KA+ks}, v102, 4, v100")
    a("v_lshl_add_u32 v100, v96, 4, v98")
    a("v_lshlrev_b32 v100, 8, v100")
    a("v_lshl_add_u32 v100, v99, 3, v100")
    a(f"v_add_u32 v100, {VBASE}, v100")
    a("v_and_b32 v101, 1, v96")
    a("v_lshl_add_u32 v101, v98, 1, v101")
    for dt in range(8):
        a(f"v_xor_b32 v102, {dt}, v101")
        a(f"v_lshl_add_u32 v{V_VA+dt}, v102, 5, v100")
    for i in range(4): a(f"v_mov_b32 v{V_ONES+i}, 0x3f803f80")
    a(f"s_mov_b32 s{S_KOFF}, 0")
    a(f"s_mov_b32 s{S_VOFF}, 0")

    def dmaKV_m0(kind, tile):
        return f"s_add_u32 m0, s{S_M0KV}, {(KBASE if kind == 'K' else VBASE) + (tile % 4) * 16384}"
    def dmaKV(kind, tile, i):
        vm.issue((kind, tile))
        vo, srd_, so = (V_DK, S_K, S_KOFF) if kind == "K" else (V_DV, S_V, S_VOFF)
        return f"buffer_load_dwordx4 v{vo}, {sr(srd_,4)}, s{so} offen offset:{1024*i} lds"
    def dmaKV_adv(kind):
        so = S_KOFF if kind == "K" else S_VOFF
        return f"s_add_u32 s{so}, s{so}, 16384"
    def dmaKV_all(kind, tile):
        return [dmaKV_m0(kind, tile), "s_nop 0"] + [dmaKV(kind, tile, i) for i in range(4)] + [dmaKV_adv(kind)]

    NT = 26
    order = list(range(18, 26)) + [x for t in range(9) for x in (t, 9+t)]
    AHEAD = 3
    def readA(x, i4):
        ks, p = divmod(x, NT)
        X = order[p]
        sl = ks % NW
        if X < 18:
            up, t = divmod(X, 9)
            ad, off = V_GU + sl, up*288 + t*32
        else:
            q = X - 18
            ad, off = V_WQ + sl, (q//2)*64 + (q%2)*8
        lg.issue(("A", x))
        return f"ds_read_b64_tr_b16 {vr(V_A + (x % 4)*4 + 2*i4, 2)}, v{ad} offset:{off + i4*16*WPITCH}"
    for i in range(256): a(f"v_accvgpr_write_b32 a{i}, 0")
    for i in range(160): a(f"v_mov_b32 v{96+i}, 0")
    a(vm.wait(("W", 0), ("B", 0)))
    a("s_barrier")
    st()
    for x in range(AHEAD):
        a(readA(x, 0)); a(readA(x, 1))
    a(lg.wait(("A", 0)))
    NKS = 18
    def kstep(ks):
        o = []
        barg = 4*(NT - AHEAD) - 2
        for p in range(NT):
            x = NT*ks + p
            X = order[p]
            for nt in range(4):
                g = 4*p + nt
                acc = rg(acc_reg(X, nt))
                o.append(f"{MF} {acc}, {vr(V_A+(x%4)*4,4)}, {vr(V_B+(ks%2)*16+4*nt,4)}, {acc}")
                if nt == 3 and x + 1 < NT*NKS:
                    o.append(always_wait(lg, ("A", x+1)))
                if g == 4*NT - 2 and ks + 1 < NKS:
                    o.append(always_wait(vm, ("B", ks+1)))
                if g == barg and ks + 1 < NKS:
                    o.append(always_wait(vm, ("W", ks+1)))
                    o.append("s_barrier")
                if 0 <= p <= 3 and nt == 2 and ks + 1 < NKS:
                    o.append(loadB(ks+1, p))
                if p == 4 and nt == 0 and ks + 1 < NKS: o.append(B_adv)
                dm = ks + 2
                if ks >= 1 and dm < NKS and 4 <= p <= 11:
                    if nt == 1: o.append(dmaW_m0(dm, p-4))
                    if nt == 2: o.append(dmaW(dm, p-4))
                    if nt == 3: o.append(dmaW_adv)
                if ks == NKS - 2 and 4 <= p <= 8:
                    if nt == 1 and p == 4: o.append(dmaKV_m0("K", 0))
                    if nt == 2 and p < 8: o.append(dmaKV("K", 0, p-4))
                    if nt == 1 and p == 8: o.append(dmaKV_adv("K"))
                if nt < 2 and x + AHEAD < NT*NKS:
                    o.append(readA(x + AHEAD, nt))
        return o
    steps = [kstep(ks) for ks in range(NKS)]
    a(steps[0])
    a(f"s_mov_b32 s{S_CNT}, 3")
    a.raw(".p2align 6")
    a.label("L_proj")
    a(fold([sum(steps[1+4*p:5+4*p], []) for p in range(3)]))
    a(f"s_sub_u32 s{S_CNT}, s{S_CNT}, 1")
    a(f"s_cmp_lg_u32 s{S_CNT}, 0")
    a("s_cbranch_scc1 L_proj")
    for ks in range(13, NKS): a(steps[ks])
    st()
    a("s_barrier")
    a(dmaKV_all("K", 1)); a(dmaKV_all("V", 0)); a(dmaKV_all("K", 2)); a(dmaKV_all("V", 1)); a(dmaKV_all("K", 3))
    for ks in range(4):
        for qt in range(4):
            for e in range(2):
                src = acc_reg(18 + 2*ks + e, qt)[1]
                for i in range(4): a(f"v_mul_f32 v{src+i}, s{S_C}, v{src+i}")
                for i in range(2): a(f"v_cvt_pk_bf16_f32 v{V_Q + (qt*4+ks)*4 + 2*e + i}, v{src+2*i}, v{src+2*i+1}")
    for nt in range(4): a(f"v_add_u32 v{128+nt}, {147456*nt}, v{V_L16}")
    a(f"s_mul_i32 s{S_T0}, s{S_J}, 9")
    TB = 132
    n = 0
    for t in range(9):
        a(f"s_add_u32 s{S_T1}, s{S_T0}, {t}")
        a(f"s_and_b32 s{S_CNT}, s{S_T1}, 1")
        a(f"s_lshr_b32 s{S_T1}, s{S_T1}, 1")
        a(f"s_lshl_b32 s{S_T1}, s{S_T1}, 10")
        a(f"s_lshl_b32 s{S_CNT}, s{S_CNT}, 3")
        a(f"s_add_u32 s{S_T1}, s{S_T1}, s{S_CNT}")
        for nt in range(4):
            tb = TB + (n % 4) * 12; n += 1
            g_, u_ = acc_reg(t, nt), acc_reg(9+t, nt)
            if g_[0] == "a":
                for i in range(4): a(f"v_accvgpr_read_b32 v{tb+i}, a{g_[1]+i}")
                for i in range(4): a(f"v_accvgpr_read_b32 v{tb+4+i}, a{u_[1]+i}")
                gs, us = tb, tb+4
            else:
                gs, us = g_[1], u_[1]
            for i in range(4): a(f"v_mul_f32 v{tb+i}, v{gs+i}, v{us+i}")
            for i in range(2): a(f"v_cvt_pk_bf16_f32 v{tb+8+i}, v{tb+2*i}, v{tb+2*i+1}")
            vm.issue(("HS",))
            a(f"buffer_store_dwordx2 {vr(tb+8,2)}, v{128+nt}, {sr(S_H,4)}, s{S_T1} offen")
    st()
    def readK(u, f, slot=None):
        tile, kb = divmod(u, 2)
        kt, ks = divmod(f, 4)
        lg.issue(("K", u, f))
        sl = tile % 4 if slot is None else slot
        return f"ds_read_b128 {ar(A_K+4*f,4)}, v{V_KA+ks} offset:{sl*16384 + (2*kb+kt)*1024}"
    def readV(u, dt, i4, slot=None):
        tile, kb = divmod(u, 2)
        lg.issue(("V", u, dt))
        sl = tile % 4 if slot is None else slot
        return f"ds_read_b64_tr_b16 {ar(A_V+4*dt+2*i4,2)}, v{V_VA+dt} offset:{sl*16384 + kb*2048 + i4*1024}"
    def Sreg(u, kt, qt): return V_S + (u % 2) * 32 + (kt*4+qt) * 4
    def Preg(u, qt): return V_P + (u % 2) * 16 + qt * 4
    def qk(u, kt, qt, ks, czero=False):
        d = vr(Sreg(u,kt,qt),4)
        c = d if ks > 0 else ("0" if czero else vr(V_NEGM+4*qt,4))
        return f"{MF} {d}, {ar(A_K+4*(kt*4+ks),4)}, {vr(V_Q+(qt*4+ks)*4,4)}, {c}"
    def pv(u, dt, qt):
        o_ = ar(A_O + (qt*8+dt)*4, 4)
        return f"{MF} {o_}, {ar(A_V+4*dt,4)}, {vr(Preg(u,qt),4)}, {o_}"
    def lsum(u, qt):
        o_ = ar(A_L + qt*4, 4)
        return f"{MF} {o_}, {vr(V_ONES,4)}, {vr(Preg(u,qt),4)}, {o_}"
    def xmax(r, t):
        return [f"v_mov_b32 v{t}, v{r}", "s_nop 1", f"v_permlane16_swap_b32 v{t}, v{r}", "s_nop 1", f"v_max_f32 v{r}, v{r}, v{t}",
                f"v_mov_b32 v{t}, v{r}", "s_nop 1", f"v_permlane32_swap_b32 v{t}, v{r}", "s_nop 1", f"v_max_f32 v{r}, v{r}, v{t}"]

    a(vm.wait(("K", 0)))
    a("s_barrier")
    for f in range(8): a(readK(0, f))
    zl = [f"v_accvgpr_write_b32 a{i}, 0" for i in range(144)]
    a(f"v_mov_b32 v{V_TMP+8}, {LDS_FLAG}")
    a(f"v_mov_b32 v{V_TMP+9}, 0")
    a(f"ds_write_b32 v{V_TMP+8}, v{V_TMP+9}"); lg.issue(("F",))
    a(zl[:24]); zl = zl[24:]
    a(lg.wait(*[("K", 0, f) for f in range(4)]))
    for qt in range(4):
        for ks in range(4):
            a(qk(1, 0, qt, ks, czero=True))
            a(zl[:2]); zl = zl[2:]
    a(zl[:8]); zl = zl[8:]
    for qt in range(4):
        S = Sreg(1, 0, qt)
        a(f"v_max3_f32 v{V_TMP+qt}, v{S}, v{S+1}, v{S+2}")
        a(f"v_max_f32 v{V_TMP+qt}, v{V_TMP+qt}, v{S+3}")
    xs = [xmax(V_TMP+qt, V_TMP+4+qt) for qt in range(4)]
    for k in range(len(xs[0])):
        if xs[0][k].startswith("s_nop"): continue
        for qt in range(4): a(xs[qt][k])
    for qt in range(4):
        for i in range(4): a(f"v_sub_f32 v{V_NEGM+4*qt+i}, 0, v{V_TMP+qt}")
    a(lg.wait(*[("K", 0, f) for f in range(8)]))
    a("s_nop 1")
    g = 0
    for kt in range(2):
        for qt in range(4):
            for ks in range(4):
                a(qk(0, kt, qt, ks))
                if kt == 1 and qt == 0: a(readK(1, ks)); a(zl[:1]); zl = zl[1:]
                else: a(zl[:2]); zl = zl[2:]
    a(zl)
    for f in range(4, 8): a(readK(1, f))
    st()

    def unit(u, do_qk=True, do_sm=True, do_pv=True):
        mf = []
        if do_qk: mf += [("qk", kt, qt, ks) for kt in range(2) for qt in range(4) for ks in range(4)]
        nq = len(mf)
        if do_pv:
            for dt in range(8):
                mf += [("pv", dt, qt) for qt in range(4)]
                if dt % 2 == 1: mf.append(("ls", dt // 2))
        n = len(mf)
        full = do_qk and do_pv
        sc = [[] for _ in range(n)]; mem = [[] for _ in range(n)]; va = [[] for _ in range(n)]
        post = []
        even = (u % 2 == 0)
        if do_sm:
            el = [(kt, qt, i) for qt in range(4) for kt in range(2) for i in range(4)]
            if full: eg = list(range(0, 64, 2))
            else: eg = [k * n // 32 for k in range(32)]
            for k, (kt, qt, i) in enumerate(el):
                r = Sreg(u, kt, qt) + i
                va[eg[k]].append(f"v_exp_f32 v{r}, v{r}")
                if i % 2 == 1:
                    c = f"v_cvt_pk_bf16_f32 v{Preg(u,qt)+2*kt+i//2}, v{r-1}, v{r}"
                    cg = eg[k] + 1
                    if cg < n: va[cg].insert(0, c)
                    else: post += ["s_nop 0", c]
        o = []
        vgap = {}; kgap = {}; dgap = {}
        if full:
            for k in range(16): vgap[2*k+1] = (k // 2, k % 2)
            for f, gg in enumerate((35, 39, 43, 47, 51, 55, 59, 63)): kgap[gg] = f
            for i, gg in enumerate((37, 41, 45, 49)): dgap[gg] = i
        pre = []
        if do_pv and not full:
            for k in range(16): pre.append(readV(u-1, k // 2, k % 2))
            pre.append(always_wait(lg, ("V", u-1, 0), ("V", u-1, 1)))
        if do_qk and not full:
            for f, gg in enumerate((17, 19, 21, 23)): kgap[gg] = f
            for i, gg in enumerate((25, 27, 29, 31)): dgap[gg] = i
        o += pre
        kind, tile = ("K", u//2+4) if even else ("V", (u-1)//2+2)
        for g, m in enumerate(mf):
            if m[0] == "qk": o.append(qk(u+1, m[1], m[2], m[3]))
            elif m[0] == "pv": o.append(pv(u-1, m[1], m[2]))
            else: o.append(lsum(u-1, m[1]))
            nxt = mf[g+1] if g + 1 < n else None
            if nxt and nxt[0] == "qk" and nxt[1:] == (1, 0, 0):
                o.append(always_wait(lg, *[("K", u+1, f) for f in range(8)]))
            if nxt and nxt[0] == "pv" and nxt[2] == 0 and nxt[1] % 2 == 0 and (full or nxt[1] > 0):
                o.append(always_wait(lg, ("V", u-1, nxt[1]), ("V", u-1, nxt[1]+1)))
            if nxt is None and do_qk and u + 2 < 64:
                pass
            barg = 33 if full else 15
            if g == barg and even and do_qk:
                o.append(always_wait(vm, ("K", u//2+1), ("V", u//2)))
                o.append("s_barrier")
            if do_qk and dgap and g == min(dgap) - 1: o.append(dmaKV_m0(kind, tile))
            if do_qk and dgap and g == max(dgap) + 1: o.append(dmaKV_adv(kind))
            if g in vgap: o.append(readV(u-1, *vgap[g]))
            if g in kgap and u + 2 < 64: o.append(readK(u+2, kgap[g]))
            if g in dgap: o.append(dmaKV(kind, tile, dgap[g]))
            o += va[g]
        o += post
        if do_qk and not full:
            o.append(dmaKV_adv(kind))
            for f in range(4, 8): o.append(readK(u+2, f))
        if do_qk and u + 2 < 64:
            w = always_wait(lg, *[("K", u+2, f) for f in range(4)])
            if full:
                idx = max(i for i, l in enumerate(o) if l.startswith(MF))
                o.insert(idx + 1, w)
            else: o.append(w)
        return o
    a(lg.wait(*[("K", 1, f) for f in range(4)]))
    a(unit(0, do_pv=False))
    units = {u: unit(u) for u in range(1, 63)}
    tail63 = unit(63, do_qk=False)
    tail64 = unit(64, do_qk=False, do_sm=False)
    a(f"s_mov_b32 s{S_CNT}, 7")
    a.raw(".p2align 6")
    a.label("L_attn")
    for pos in range(1, 9):
        insts = [units[u] for u in range(pos, 62, 8)]
        if pos == 6:
            a(f"s_cmp_eq_u32 s{S_CNT}, 0")
            a("s_cbranch_scc1 L_attn_tail")
        a(fold(insts))
    a(f"s_sub_u32 s{S_CNT}, s{S_CNT}, 1")
    a("s_branch L_attn")
    a.label("L_attn_tail")
    a(units[62]); a(tail63); a("s_nop 1"); a(tail64)
    st()
    a(f"s_mov_b32 s{S_CNT}, 0")
    a.label("L_epi")
    a("s_nop 7")
    for qt in range(4): a(f"v_accvgpr_read_b32 v{V_TMP+qt}, a{A_L+4*qt}")
    a(f"v_max3_f32 v{V_TMP+4}, v{V_TMP}, v{V_TMP+1}, v{V_TMP+2}")
    a(f"v_add_f32 v{V_TMP+5}, v{V_TMP}, v{V_TMP+1}")
    a(f"v_add_f32 v{V_TMP+6}, v{V_TMP+2}, v{V_TMP+3}")
    a(f"v_add_f32 v{V_TMP+5}, v{V_TMP+5}, v{V_TMP+6}")
    a(f"v_cmp_nge_f32 vcc, s{S_THR}, v{V_TMP+5}")
    for qt in range(4): a(f"v_rcp_f32 v{V_TMP+qt}, v{V_TMP+qt}")
    a("s_cbranch_vccz L_noflag")
    a(f"v_mov_b32 v{V_TMP+8}, {LDS_FLAG}")
    a(f"v_mov_b32 v{V_TMP+9}, 1")
    a(f"ds_write_b32 v{V_TMP+8}, v{V_TMP+9}")
    a.label("L_noflag")
    for qt in range(4): a(f"v_add_u32 v{V_TMP+12+qt}, {131072*qt}, v{V_L16}")
    a(f"s_lshl_b32 s{S_T1}, s{S_J}, 12")
    n = 0
    for qt in range(4):
        for p in range(4):
            tb = 128 + (n % 4) * 12; n += 1
            base = A_O + (qt*8+2*p)*4
            for i in range(8): a(f"v_accvgpr_read_b32 v{tb+i}, a{base+i}")
            for i in range(8): a(f"v_mul_f32 v{tb+i}, v{tb+i}, v{V_TMP+qt}")
            for i in range(4): a(f"v_cvt_pk_bf16_f32 v{tb+8+i}, v{tb+2*i}, v{tb+2*i+1}")
            a(f"buffer_store_dwordx4 {vr(tb+8,4)}, v{V_TMP+12+qt}, {sr(S_O,4)}, s{S_T1} offen offset:{p*1024}")
    a(f"s_cmp_lg_u32 s{S_CNT}, 0")
    a("s_cbranch_scc1 L_k1_fin")
    a("s_waitcnt lgkmcnt(0)")
    a("s_barrier")
    a(f"v_mov_b32 v{V_TMP+8}, {LDS_FLAG}")
    a(f"ds_read_b32 v{V_TMP+9}, v{V_TMP+8}")
    a("s_waitcnt lgkmcnt(0)")
    a(f"v_readfirstlane_b32 s{S_T0}, v{V_TMP+9}")
    a(f"s_cmp_lg_u32 s{S_T0}, 0")
    a("s_cbranch_scc1 L_slow")
    a.label("L_k1_fin")
    if opt.get("stamp"):
        st()
        a("s_waitcnt vmcnt(0)")
        st(); st(True)
        st.dump(46, 47, 0x5000000, S_W)
    a.label("L_k1_done")
    a("s_endpgm")
    a.label("L_slow")
    V_M = V_NEGM
    a("s_waitcnt vmcnt(0)")
    for i in range(144): a(f"v_accvgpr_write_b32 a{i}, 0")
    for qt in range(4): a(f"v_mov_b32 v{V_M+qt}, 0xff7fffff")
    a(f"s_mov_b32 s{S_KOFF}, 0")
    a(f"s_mov_b32 s{S_VOFF}, 0")
    a(f"s_mov_b32 s{S_CNT}, 32")
    a.label("L_slow_loop")
    a("s_barrier")
    a(dmaKV_all("K", 0)); a(dmaKV_all("V", 0))
    a("s_waitcnt vmcnt(0)")
    a("s_barrier")
    for kb in range(2):
        for f in range(8): a(readK(kb, f))
        a("s_waitcnt lgkmcnt(0)")
        for k in range(16): a(readV(kb, k // 2, k % 2))
        for kt in range(2):
            for qt in range(4):
                for ks in range(4): a(qk(0, kt, qt, ks, czero=True))
        a("s_nop 7"); a("s_nop 7")
        for qt in range(4):
            S0, S1 = Sreg(0, 0, qt), Sreg(0, 1, qt)
            mx, t2, fs = V_TMP, V_TMP+1, V_TMP+2
            a(f"v_max3_f32 v{mx}, v{S0}, v{S0+1}, v{S0+2}")
            a(f"v_max3_f32 v{mx}, v{mx}, v{S0+3}, v{S1}")
            a(f"v_max3_f32 v{mx}, v{mx}, v{S1+1}, v{S1+2}")
            a(f"v_max3_f32 v{mx}, v{mx}, v{S1+3}, v{V_M+qt}")
            a(xmax(mx, t2))
            a(f"v_sub_f32 v{fs}, v{V_M+qt}, v{mx}")
            a(f"v_exp_f32 v{fs}, v{fs}")
            a(f"v_mov_b32 v{V_M+qt}, v{mx}")
            for S in (S0, S1):
                for i in range(4): a(f"v_sub_f32 v{S+i}, v{S+i}, v{mx}")
                for i in range(4): a(f"v_exp_f32 v{S+i}, v{S+i}")
            a("s_nop 0")
            for kt, S in enumerate((S0, S1)):
                for i in range(2): a(f"v_cvt_pk_bf16_f32 v{Preg(0,qt)+2*kt+i}, v{S+2*i}, v{S+2*i+1}")
            regs = [A_O + qt*32 + i for i in range(32)] + [A_L + qt*4 + i for i in range(4)]
            for b in range(0, 36, 12):
                for i, r in enumerate(regs[b:b+12]): a(f"v_accvgpr_read_b32 v{V_TMP+8+i}, a{r}")
                for i in range(12): a(f"v_mul_f32 v{V_TMP+8+i}, v{V_TMP+8+i}, v{fs}")
                for i, r in enumerate(regs[b:b+12]): a(f"v_accvgpr_write_b32 a{r}, v{V_TMP+8+i}")
        a("s_waitcnt lgkmcnt(0)")
        a("s_nop 1")
        for dt in range(8):
            for qt in range(4): a(pv(0, dt, qt))
        for qt in range(4): a(lsum(0, qt))
    a(f"s_sub_u32 s{S_CNT}, s{S_CNT}, 1")
    a(f"s_cmp_lg_u32 s{S_CNT}, 0")
    a("s_cbranch_scc1 L_slow_loop")
    a(f"s_mov_b32 s{S_CNT}, 1")
    a("s_branch L_epi")
    a.raw(kdesc(name, 512, 102 if opt.get('stamp') else 64, 256))
    return a.text()
```

```python
from asmlib import *
from k1 import fold, always_wait, WS_H, WS_O
import k1
WS_P = 0x3000000
CH = 36864
K2_LDS = 4 * CH
OOB = 0x40000000

def owner(t):
    T, nb = divmod(t, 2)
    return T % 4 if T < 8 else nb

def gen_k2(name, opt=None):
    opt = opt or {}
    a = Asm()
    vm = Counter("vmcnt", 63); lg = Counter("lgkmcnt", 15)
    S_WT, S_B0, S_B1, S_PO, S_X, S_OUT = 4, 8, 12, 16, 20, 52
    S_W, S_PART, S_RB, S_CB, S_CNT, S_WOFF, S_BOFF, S_M0, S_T0, S_T1, S_T2, S_STR, S_N, S_CI, S_REM, S_GRP = range(24, 40)
    S_DBG = 50
    V_DW = 2
    V_L16 = 11
    V_RA = 12
    V_A = 20
    V_ACC = 68
    V_XO = 146
    V_X = 148
    A_B = 0
    a.raw(kstart(name))
    a("s_cmp_ge_u32 s2, 256")
    a("s_cbranch_scc1 L_k2_done")
    st = Stamps(a, opt.get("stamp"))
    st(True); st()
    a("s_load_dwordx2 s[40:41], s[0:1], 32")
    a("s_load_dwordx2 s[42:43], s[0:1], 64")
    a("s_load_dwordx2 s[44:45], s[0:1], 88")
    a(f"s_load_dwordx2 {sr(S_X,2)}, s[0:1], 0")
    a(f"s_load_dwordx2 {sr(S_OUT,2)}, s[0:1], 72")
    a(f"s_load_dwordx2 {sr(S_DBG,2)}, s[0:1], 80")
    a("v_lshrrev_b32 v1, 6, v0")
    a("v_and_b32 v0, 63, v0")
    a(f"v_readfirstlane_b32 s{S_W}, v1")
    a(f"s_bfe_u32 s{S_PART}, s2, 0x20001")
    a(f"s_and_b32 s{S_T0}, s2, 1")
    a(f"s_lshl_b32 s{S_T0}, s{S_T0}, 3")
    a(f"s_bfe_u32 s{S_T1}, s2, 0x30003")
    a(f"s_add_u32 s{S_RB}, s{S_T0}, s{S_T1}")
    a(f"s_lshl_b32 s{S_CI}, s{S_T1}, 1" if not opt.get("norot") else f"s_mov_b32 s{S_CI}, 0")
    a(f"s_lshr_b32 s{S_CB}, s2, 6")
    a(f"v_lshlrev_b32 v{V_L16}, 4, v0")
    a(f"s_mul_i32 s{S_T0}, s{S_W}, {32*1152}")
    a(f"s_mul_i32 s{S_T1}, s{S_CB}, 288")
    a(f"s_add_u32 s{S_T0}, s{S_T0}, s{S_T1}")
    a(f"s_mov_b32 s{S_T1}, 3641")
    for i in range(9):
        a(f"v_add_u32 v140, {64*i}, v0")
        a(f"v_mul_lo_u32 v141, v140, s{S_T1}")
        a("v_lshrrev_b32 v141, 16, v141")
        a("v_mul_u32_u24 v142, 18, v141")
        a("v_sub_u32 v142, v140, v142")
        a("v_mul_u32_u24 v141, 1152, v141")
        a("v_lshl_add_u32 v141, v142, 4, v141")
        a(f"v_subrev_u32 v141, {1024*(i%4)}, v141")
        a(f"v_add_u32 v{V_DW+i}, s{S_T0}, v141")
    a(f"s_mul_i32 s{S_M0}, s{S_W}, 9216")
    a("s_waitcnt lgkmcnt(0)")
    a(f"s_and_b32 s{S_T2}, s{S_PART}, 1")
    a(f"s_cmp_lt_u32 s{S_PART}, 2")
    a(f"s_cselect_b32 s46, s40, s42")
    a(f"s_cselect_b32 s47, s41, s43")
    a(f"s_cselect_b32 s{S_N}, 16, 18")
    a(f"s_cselect_b32 s48, {WS_O>>22}, {WS_H>>22}")
    a("s_lshl_b32 s48, s48, 22")
    a(f"s_lshl_b32 s{S_STR}, s{S_N}, 13")
    a(f"s_mul_i32 s49, s{S_N}, {128*1152}")
    a(f"s_mul_i32 s{S_T0}, s49, s{S_T2}")
    a(f"s_add_u32 s{S_WT}, s46, s{S_T0}")
    a(f"s_addc_u32 s{S_WT+1}, s47, 0")
    a(f"s_and_b32 s{S_WT+1}, s{S_WT+1}, 0xffff")
    a(f"s_mov_b32 s{S_WT+2}, s49")
    a(f"s_mov_b32 s{S_WT+3}, 0x20000")
    a(f"s_lshr_b32 s49, s{S_STR}, 1")
    a(f"s_lshl_b32 s{S_T0}, s{S_RB}, 3")
    a(f"s_lshl_b32 s{S_T1}, s{S_W}, 1")
    a(f"s_add_u32 s{S_T0}, s{S_T0}, s{S_T1}")
    a(f"s_mul_i32 s{S_T0}, s{S_T0}, s{S_STR}")
    a(f"s_mul_i32 s{S_T1}, s49, s{S_T2}")
    a(f"s_add_u32 s{S_T0}, s{S_T0}, s{S_T1}")
    a(f"s_add_u32 s{S_T0}, s{S_T0}, s48")
    for nb, sb in enumerate((S_B0, S_B1)):
        if nb: a(f"s_add_u32 s{S_T0}, s{S_T0}, s{S_STR}")
        a(f"s_add_u32 s{sb}, s44, s{S_T0}")
        a(f"s_addc_u32 s{sb+1}, s45, 0")
        a(f"s_and_b32 s{sb+1}, s{sb+1}, 0xffff")
        a(f"s_mov_b32 s{sb+2}, s49")
        a(f"s_mov_b32 s{sb+3}, 0x20000")
    a(f"s_mov_b32 s{S_REM}, s{S_N}")
    a(f"s_mov_b32 s{S_CNT}, s{S_N}")
    a(f"s_mul_i32 s{S_WOFF}, s{S_CI}, {128*1152}")
    a(f"s_lshl_b32 s{S_BOFF}, s{S_CI}, 12")
    def advance():
        return [f"s_add_u32 s{S_CI}, s{S_CI}, 1",
                f"s_cmp_eq_u32 s{S_CI}, s{S_N}",
                f"s_cselect_b32 s{S_CI}, 0, s{S_CI}",
                f"s_mul_i32 s{S_WOFF}, s{S_CI}, {128*1152}",
                f"s_lshl_b32 s{S_BOFF}, s{S_CI}, 12",
                f"s_sub_u32 s{S_REM}, s{S_REM}, 1",
                f"s_cmp_gt_i32 s{S_REM}, 0",
                f"s_cselect_b32 s{S_WOFF}, s{S_WOFF}, {OOB}",
                f"s_cselect_b32 s{S_BOFF}, s{S_BOFF}, {OOB}"]
    def dmaW(c, i):
        vm.issue(("W", c))
        l = []
        if i % 4 == 0:
            l += [f"s_add_u32 m0, s{S_M0}, {(c%4)*CH + 1024*i}", "s_nop 0"]
        l.append(f"buffer_load_dwordx4 v{V_DW+i}, {sr(S_WT,4)}, s{S_WOFF} offen offset:{1024*(i%4)} lds")
        return l
    def Breg(c, ks, nb): return A_B + (((c % 4) * 4 + ks) * 2 + nb) * 4
    def loadB(c, ks, nb):
        vm.issue(("B", c, ks))
        return [f"buffer_load_dwordx4 {ar(Breg(c,ks,nb),4)}, v{V_L16}, {sr((S_B0,S_B1)[nb],4)}, s{S_BOFF} offen offset:{1024*ks}"]
    for c in range(3):
        for i in range(9): a(dmaW(c, i))
        for ks in range(4):
            for nb in range(2): a(loadB(c, ks, nb))
        a(advance())
    a("v_lshrrev_b32 v140, 4, v0")
    a("v_and_b32 v141, 1, v140")
    a("v_bfe_u32 v142, v0, 2, 2")
    a("v_and_b32 v143, 3, v0")
    for i4 in range(2):
        if k1.LAYOUT == "swapodd":
            a(f"v_xor_b32 v144, {i4}, v141")
            a("v_lshl_add_u32 v144, v144, 2, v142")
            a("v_lshl_add_u32 v144, v140, 3, v144")
        else:
            a("v_lshl_add_u32 v144, v140, 2, v142")
            a(f"v_add_u32 v144, {16*i4}, v144")
        a("v_mul_u32_u24 v144, 288, v144")
        a("v_lshl_add_u32 v144, v143, 3, v144")
        for sl in range(4):
            a(f"v_add_u32 v{V_RA+2*sl+i4}, {sl*CH}, v144")
    a("v_and_b32 v144, 15, v0")
    a("v_mul_u32_u24 v144, 1152, v144")
    a(f"v_lshl_add_u32 v{V_XO}, v140, 3, v144")
    a(f"s_add_u32 s{S_PO}, s44, {WS_P}")
    a(f"s_addc_u32 s{S_PO+1}, s45, 0")
    a(f"s_and_b32 s{S_PO+1}, s{S_PO+1}, 0xffff")
    a(f"s_mov_b32 s{S_PO+2}, {4*4718592}")
    a(f"s_mov_b32 s{S_PO+3}, 0x20000")
    for b in (S_X, S_OUT):
        a(f"s_and_b32 s{b+1}, s{b+1}, 0xffff")
        a(f"s_mov_b32 s{b+2}, 2359296")
        a(f"s_mov_b32 s{b+3}, 0x20000")
    a(f"s_lshl_b32 s{S_GRP}, s{S_RB}, 2")
    a(f"s_add_u32 s{S_GRP}, s{S_GRP}, s{S_CB}")
    for i in range(72): a(f"v_mov_b32 v{V_ACC+i}, 0")
    AHEAD = 6
    def readA(x, i4):
        c, rem = divmod(x, 36)
        ks, T = divmod(rem, 9)
        lg.issue(("A", x))
        return f"ds_read_b64_tr_b16 {vr(V_A+(x%12)*4+2*i4,2)}, v{V_RA+2*(c%4)+i4} offset:{ks*9216+T*32}"
    a(vm.wait(("W", 0)))
    a("s_barrier")
    st()
    for x in range(AHEAD):
        a(readA(x, 0)); a(readA(x, 1))
    def chunk(c):
        o = []
        vq = [("W", i) for i in range(9)] + [("B", ks, nb) for ks in range(4) for nb in range(2)]
        vgaps = list(range(3, 3 + 3*17, 3))
        adv = advance()
        for x0 in range(36):
            x = 36*c + x0
            ks, T = divmod(x0, 9)
            for nb in range(2):
                g = 2*x0 + nb
                if T == 0 and nb == 0: o.append(always_wait(vm, ("B", c, ks)))
                if nb == 0 and x0 % 2 == 0: o.append(always_wait(lg, ("A", x), ("A", x+1)))
                acc = vr(V_ACC + (2*T+nb)*4, 4)
                o.append(f"v_mfma_f32_16x16x32_bf16 {acc}, {vr(V_A+(x%12)*4,4)}, {ar(Breg(c,ks,nb),4)}, {acc}")
                if g == 1:
                    o.append("s_barrier")
                if g == 2*(36-AHEAD) - 1:
                    o.append(always_wait(vm, ("W", c+1)))
                    o.append("s_barrier")
                o.append(readA(x + AHEAD, nb))
                if g in vgaps:
                    op = vq[vgaps.index(g)]
                    o.extend(dmaW(c+3, op[1]) if op[0] == "W" else loadB(c+3, op[1], op[2]))
                if g >= 61 and adv: o.append(adv.pop(0))
        assert not adv
        return o
    chunks = [chunk(c) for c in range(18)]
    a.raw(".p2align 6")
    a.label("L_k2_loop")
    for pos in range(4):
        a(fold([chunks[c] for c in range(pos, 18, 4)]))
        a(f"s_sub_u32 s{S_CNT}, s{S_CNT}, 1")
        if pos == 1:
            a(f"s_cmp_eq_u32 s{S_CNT}, 0")
            a("s_cbranch_scc1 L_k2_epi")
        if pos == 3:
            a(f"s_cmp_eq_u32 s{S_CNT}, 0")
            a("s_cbranch_scc0 L_k2_loop")
    a.label("L_k2_epi")
    st()
    a(f"s_lshl_b32 s{S_T0}, s{S_GRP}, 2")
    a(f"s_add_u32 s{S_T0}, s{S_T0}, s{S_W}")
    a(f"s_mul_i32 s{S_T0}, s{S_T0}, {18*1024}")
    a(f"s_mul_i32 s{S_T1}, s{S_PART}, 4718592")
    a(f"s_add_u32 s{S_T1}, s{S_T1}, s{S_T0}")
    a(f"s_lshl_b32 s{S_T2}, s{S_RB}, 2")
    a(f"s_add_u32 s{S_T2}, s{S_T2}, s{S_W}")
    a(f"s_mul_i32 s{S_T2}, s{S_T2}, {32*1152}")
    a(f"s_mul_i32 s{S_CI}, s{S_CB}, 288")
    a(f"s_add_u32 s{S_T2}, s{S_T2}, s{S_CI}")
    a(f"s_add_u32 s{S_STR}, s{S_T2}, {16*1152}")
    stn = st.n
    a("s_waitcnt lgkmcnt(0)")
    for p in range(1, 4):
        a(f"s_cmp_eq_u32 s{S_PART}, {p}")
        a(f"s_cbranch_scc1 L_k2_e{p}")
    for p in range(4):
        a.label(f"L_k2_e{p}")
        st.n = stn
        own = [t for t in range(18) if owner(t) == p]
        oth = [t for t in range(18) if owner(t) != p]
        for t in oth:
            a(f"s_add_u32 s{S_CI}, s{S_T1}, {(t//4)*4096}")
            a(f"buffer_store_dwordx4 {vr(V_ACC+4*t,4)}, v{V_L16}, {sr(S_PO,4)}, s{S_CI} offen offset:{1024*(t%4)} sc1")
        for i, t in enumerate(own):
            T, nb = divmod(t, 2)
            a(f"buffer_load_dwordx2 {vr(V_X+2*i,2)}, v{V_XO}, {sr(S_X,4)}, s{S_STR if nb else S_T2} offen offset:{T*32}")
        a("s_waitcnt vmcnt(0)")
        a("s_barrier")
        st()
        a(f"s_cmp_lg_u32 s{S_W}, 0")
        a(f"s_cbranch_scc1 L_k2_w{p}")
        a(f"s_lshl_b32 s{S_CI}, s{S_GRP}, 2")
        a(f"v_mov_b32 v140, s{S_CI}")
        a("v_mov_b32 v141, 1")
        a("s_mov_b64 exec, 1")
        a(f"global_atomic_add v140, v141, {sr(S_DBG,2)}")
        a(f"s_mov_b32 s{S_REM}, 200000")
        a.label(f"L_k2_poll{p}")
        a(f"global_load_dword v142, v140, {sr(S_DBG,2)} sc1")
        a("s_waitcnt vmcnt(0)")
        a(f"v_readfirstlane_b32 s{S_CI}, v142")
        a(f"s_cmp_ge_u32 s{S_CI}, 4")
        a(f"s_cbranch_scc1 L_k2_pd{p}")
        a("s_sleep 1")
        a(f"s_sub_u32 s{S_REM}, s{S_REM}, 1")
        a(f"s_cmp_lg_u32 s{S_REM}, 0")
        a(f"s_cbranch_scc1 L_k2_poll{p}")
        a.label(f"L_k2_pd{p}")
        a("s_mov_b64 exec, -1")
        a.label(f"L_k2_w{p}")
        a("s_barrier")
        st()
        free = [V_ACC + 4*t for t in oth] + [V_A + 4*i for i in range(8)]
        src = {}
        for i, t in enumerate(own):
            for q in range(4):
                if q == p:
                    src[(t, q)] = V_ACC + 4*t; continue
                r = free.pop(0); src[(t, q)] = r
                a(f"s_add_u32 s{S_CI}, s{S_T0}, {q*4718592 + (t//4)*4096}")
                a(f"buffer_load_dwordx4 {vr(r,4)}, v{V_L16}, {sr(S_PO,4)}, s{S_CI} offen offset:{1024*(t%4)} sc1")
        nst = 0
        for i, t in enumerate(own):
            T, nb = divmod(t, 2)
            a(f"s_waitcnt vmcnt({3*(len(own)-1-i) + nst})")
            a(final_math(src[(t,0)], src[(t,1)], src[(t,2)], src[(t,3)], V_X+2*i, 140, f"s{S_REM}"))
            a(f"buffer_store_dwordx2 {vr(V_X+2*i,2)}, v{V_XO}, {sr(S_OUT,4)}, s{S_STR if nb else S_T2} offen offset:{T*32}")
            nst += 1
        if p < 3:
            a("s_branch L_k2_fin")
    a.label("L_k2_fin")
    if opt.get("stamp"):
        st()
        a("s_waitcnt vmcnt(0)")
        st(); st(True)
        st.dump(44, 45, 0x5100000, S_W)
    a.label("L_k2_done")
    a("s_endpgm")
    a.raw(kdesc(name, 160+128, 102 if opt.get('stamp') else 64, 160))
    return a.text()

def final_math(s0, s1, d0, d1, x, t, smask):
    o = [f"s_mov_b32 {smask}, 0xffff0000"]
    for i in range(4):
        o.append(f"v_add_f32 v{s0+i}, v{s0+i}, v{s1+i}")
        o.append(f"v_add_f32 v{d0+i}, v{d0+i}, v{d1+i}")
    def rnd(b):
        r = []
        for i in range(2):
            r.append(f"v_cvt_pk_bf16_f32 v{t+i}, v{b+2*i}, v{b+2*i+1}")
        for i in range(2):
            r.append(f"v_lshlrev_b32 v{b+2*i}, 16, v{t+i}")
            r.append(f"v_and_b32 v{b+2*i+1}, {smask}, v{t+i}")
        return r
    o += rnd(s0) + rnd(d0)
    L2E = f32(-1.4426950408889634)
    for i in range(4): o.append(f"v_mul_f32 v{d1+i}, {L2E}, v{d0+i}")
    for i in range(4): o.append(f"v_exp_f32 v{d1+i}, v{d1+i}")
    for i in range(4): o.append(f"v_add_f32 v{d1+i}, 1.0, v{d1+i}")
    for i in range(4): o.append(f"v_rcp_f32 v{d1+i}, v{d1+i}")
    for i in range(4): o.append(f"v_mul_f32 v{d0+i}, v{d0+i}, v{d1+i}")
    o += rnd(d0)
    for i in range(4): o.append(f"v_mul_f32 v{s0+i}, v{s0+i}, v{d0+i}")
    o += rnd(s0)
    for i in range(2):
        o.append(f"v_lshlrev_b32 v{d0+2*i}, 16, v{x+i}")
        o.append(f"v_and_b32 v{d0+2*i+1}, {smask}, v{x+i}")
    for i in range(4): o.append(f"v_add_f32 v{s0+i}, v{s0+i}, v{d0+i}")
    for i in range(2): o.append(f"v_cvt_pk_bf16_f32 v{x+i}, v{s0+2*i}, v{s0+2*i+1}")
    return o
```

```python
from asmlib import *
WS_XN = 0
def gen_k0(name, opt=None):
    opt = opt or {}
    a = Asm()
    a.raw(kstart(name))
    a("s_cmp_ge_u32 s2, 256")
    a("s_cbranch_scc1 L_k0_done")
    st = Stamps(a, opt.get("stamp"))
    st(True); st()
    a("s_load_dwordx2 s[46:47], s[0:1], 88")
    a("s_mov_b32 s24, 0")
    a("s_load_dwordx2 s[4:5], s[0:1], 0")
    a("s_load_dwordx2 s[8:9], s[0:1], 88")
    a("v_lshrrev_b32 v1, 3, v0")
    a("v_and_b32 v2, 7, v0")
    a("s_lshl_b32 s3, s2, 3")
    a("v_add_u32 v1, s3, v1")
    a("v_mul_u32_u24 v3, 1152, v1")
    a("v_lshl_add_u32 v3, v2, 4, v3")
    a("v_lshrrev_b32 v4, 4, v1")
    a("v_mul_u32_u24 v4, 18432, v4")
    a("v_and_b32 v5, 15, v1")
    a("v_lshl_add_u32 v4, v5, 4, v4")
    a("v_lshl_add_u32 v4, v2, 8, v4")
    a("s_waitcnt lgkmcnt(0)")
    a("s_mov_b32 s6, 2359296")
    a("s_mov_b32 s7, 0x20000")
    a("s_and_b32 s5, s5, 0xffff")
    a("s_mov_b32 s10, 2359296")
    a("s_mov_b32 s11, 0x20000")
    a("s_and_b32 s9, s9, 0xffff")
    D = 8
    for i in range(9):
        a(f"buffer_load_dwordx4 {vr(D+4*i,4)}, v3, s[4:7], 0 offen offset:{128*i}")
    F = 44
    a("s_mov_b32 s12, 0xffff0000")
    for i in range(9):
        a(f"s_waitcnt vmcnt({8-i})")
        for r in range(4):
            src = D + 4*i + r
            a(f"v_lshlrev_b32 v{F+8*i+2*r}, 16, v{src}")
            a(f"v_and_b32 v{F+8*i+2*r+1}, s12, v{src}")
        for r in range(4):
            if i == 0 and r == 0:
                a(f"v_mov_b32 v6, v{F}")
                a(f"v_mov_b32 v7, v{F+1}")
            else:
                a(f"v_add_f32 v6, v6, v{F+8*i+2*r}")
                a(f"v_add_f32 v7, v7, v{F+8*i+2*r+1}")
    def red8(v):
        a("s_nop 1")
        a(f"v_add_f32_dpp {v}, {v}, {v} quad_perm:[1,0,3,2] row_mask:0xf bank_mask:0xf")
        a("s_nop 1")
        a(f"v_add_f32_dpp {v}, {v}, {v} quad_perm:[2,3,0,1] row_mask:0xf bank_mask:0xf")
        a("s_nop 1")
        a(f"v_add_f32_dpp {v}, {v}, {v} row_half_mirror row_mask:0xf bank_mask:0xf")
    a("v_add_f32 v6, v6, v7")
    red8("v6")
    a(f"v_mul_f32 v6, {f32(1.0/576)}, v6")
    a("v_mov_b32 v7, 0")
    a("v_mov_b32 v5, 0")
    for e in range(72):
        t = 116 + (e % 4)
        acc = "v7" if e % 2 == 0 else "v5"
        a(f"v_sub_f32 v{t}, v{F+e}, v6")
        a(f"v_fmac_f32 {acc}, v{t}, v{t}")
    a("v_add_f32 v7, v7, v5")
    red8("v7")
    a(f"v_mul_f32 v7, {f32(1.0/576)}, v7")
    def rb(v):
        a(f"v_cvt_pk_bf16_f32 {v}, {v}, {v}")
        a(f"v_lshlrev_b32 {v}, 16, {v}")
    rb("v6"); rb("v7")
    a(f"v_add_f32 v7, {f32(1e-5)}, v7")
    rb("v7")
    a("v_sqrt_f32 v7, v7")
    a("s_nop 0")
    rb("v7")
    a("v_rcp_f32 v7, v7")
    a("s_nop 0")
    a("v_mul_f32 v6, v6, v7")
    for i in range(9):
        for r in range(4):
            e = F + 8*i + 2*r
            a(f"v_fma_f32 v{e}, v{e}, v7, -v6")
            a(f"v_fma_f32 v{e+1}, v{e+1}, v7, -v6")
            a(f"v_cvt_pk_bf16_f32 v{D+4*i+r}, v{e}, v{e+1}")
        a(f"s_mov_b32 s13, {2048*i}")
        a(f"buffer_store_dwordx4 {vr(D+4*i,4)}, v4, s[8:11], s13 offen")
    if opt.get("stamp"):
        st()
        a("s_waitcnt vmcnt(0)")
        st(); st(True)
        st.dump(46, 47, 0x5200000, 24)
    a.label("L_k0_done")
    a("s_endpgm")
    a.raw(kdesc(name, 120, 102 if opt.get('stamp') else 48, 120))
    return a.text()
```
